```python
import torch

def _softmax(x, axis=-1):
    return torch.softmax(x, dim=axis)

def _gelu(x):
    return torch.nn.functional.gelu(x, approximate='tanh')

def _silu(x):
    return torch.nn.functional.silu(x)

def _sigmoid(x):
    return torch.sigmoid(x)

def _layernorm(x, axis=-1, eps=1e-05):
    m = x.mean(dim=axis, keepdim=True)
    v = x.var(dim=axis, keepdim=True, unbiased=False)
    return (x - m) / torch.sqrt(v + eps)

def _scatter_add(tgt, idx, src, axis=0):
    return tgt.clone().index_add_(axis, idx, src)

def _segment_sum(src, seg, n):
    out = torch.zeros((n,) + src.shape[1:], dtype=src.dtype)
    return out.index_add_(0, seg, src)

def _pad(x, pw):
    flat = tuple((v for pair in reversed(pw) for v in pair))
    return torch.nn.functional.pad(x, flat)
kernel_name = 'standalone__ragged_sequences_varlen_flash_attn__ragged'

def setup_inputs():

    _w = lambda a: (lambda t: t.to(torch.bfloat16) if t.is_floating_point() else t)(torch.as_tensor(a))
    cu = torch.tensor([0, 1918, 2650, 4254, 4580, 5262, 6323, 6815, 7972], dtype=torch.int64)
    T = int(cu[-1])
    Hq, Hkv, D = (16, 8, 128)
    assert Hq % Hkv == 0
    return {'q': _w((lambda *s: torch.randn(*s, dtype=torch.bfloat16) * 0.8)(T, Hq, D)), 'k': _w((lambda *s: torch.randn(*s, dtype=torch.bfloat16) * 0.8)(T, Hkv, D)), 'v': _w((lambda *s: torch.randn(*s, dtype=torch.bfloat16) * 0.05)(T, Hkv, D)), 'cu': _w(cu)}

def reference(q, k, v, cu):
    T, Hq, D = q.shape
    Hkv = k.shape[1]
    rep = Hq // Hkv
    scale = D ** (-0.5)
    outs = []
    for i in range(len(cu) - 1):
        s, e = (int(cu[i]), int(cu[i + 1]))
        L = e - s
        qi = q[s:e].clone()
        ki = (lambda x, n, axis: torch.repeat_interleave(x, n, dim=axis))(k[s:e], rep, axis=1)
        vi = (lambda x, n, axis: torch.repeat_interleave(x, n, dim=axis))(v[s:e], rep, axis=1)
        logits = torch.einsum('qhd,khd->hqk', qi, ki) * scale
        ar = torch.arange(L)
        neg = (lambda x, dt: x.to(dt))(ar[None, :] > ar[:, None], logits.dtype) * -1000000000.0
        p = _softmax(logits + neg[None, :, :], axis=-1)
        outs.append(torch.einsum('hqk,khd->qhd', p, vi))
    return torch.concatenate(outs, axis=0)
```

```python
import re

VEC4 = ('valu', 'perm')
MEM = ('ds', 'dsw', 'dma', 'vst', 'vld')
SCAL = ('salu', 'wait', 'bar', 'br', 'nop')

def R(p, a, n=1):
    return [f"{p}{i}" for i in range(a, a + n)]
def rs(p, a, n=1):
    return f"{p}{a}" if n == 1 else f"{p}[{a}:{a+n-1}]"

class I:
    def __init__(s, txt, cls, rd=(), wr=(), c=(), at=0, late=False, grp=None, note=None):
        s.txt, s.cls, s.rd, s.wr, s.c = txt, cls, list(rd), list(wr), list(c)
        s.at = at
        s.late = late
        s.grp = grp
        s.note = note
    def __repr__(s): return s.txt

def mfma(dp, d, ap, a, bp, b, c=None):
    if c is None: ct, cr = rs(dp, d, 4), R(dp, d, 4)
    elif c == 'z': ct, cr = "0", []
    else: ct, cr = rs(dp, c, 4), R(dp, c, 4)
    return I(f"v_mfma_f32_16x16x32_bf16 {rs(dp,d,4)}, {rs(ap,a,4)}, {rs(bp,b,4)}, {ct}", 'mfma',
             rd=R(ap, a, 4) + R(bp, b, 4) + cr, wr=R(dp, d, 4), c=cr)
def valu(txt, rd, wr, **k): return I(txt, 'valu', rd, wr, **k)
def salu(txt, rd, wr, **k): return I(txt, 'salu', rd, wr, **k)

def cost(i):
    return {'mfma': 8, 'trans': 8}.get(i.cls, 4)

def need_ws(p, q):
    w = 0
    pw, pr, qw, qr = set(p.wr), set(p.rd), set(q.wr), set(q.rd)
    isv = lambda x: x.cls in ('valu', 'perm', 'trans')
    if p.cls == 'mfma':
        if q.cls == 'mfma':
            ab = qr - set(q.c)
            if pw & ab: w = max(w, 8)
            if pw & set(q.c) and sorted(q.c) != sorted(p.wr): w = max(w, 6)
        elif isv(q) or q.cls in MEM:
            if pw & (qr | qw): w = max(w, 8)
            if isv(q) and set(p.c) & qw: w = max(w, 3)
    if isv(p):
        vw = {r for r in pw if r[0] in 'va' and r != 'vcc'}
        sw = {r for r in pw if r[0] == 's' or r == 'vcc'}
        if q.cls == 'mfma' and vw & qr: w = max(w, 2)
        if q.cls == 'perm' and vw & qr: w = max(w, 2)
        if p.cls == 'trans' and q.cls != 'trans' and vw & qr: w = max(w, 1)
        if isv(q) and sw & qr: w = max(w, 2)
        if q.cls in MEM and sw & qr: w = max(w, 5)
        if 'readfirstlane' in q.txt and vw & qr: w = max(w, 1)
        if 'readlane' in q.txt and vw & qr: w = max(w, 1)
        if 'dpp' in q.txt and vw & qr: w = max(w, 2)
        if q.cls == 'salu' and sw & qr: w = max(w, 1)
    if p.cls == 'salu' and 'm0' in pw and q.cls == 'dma': w = max(w, 1)
    if p.cls == 'vst' and (pr & qw) and q.cls not in SCAL: w = max(w, 2)
    return w

def states(i):
    if i.cls == 'label': return 0
    m = re.match(r's_nop (\d+)', i.txt)
    return int(m.group(1)) + 1 if m else 1

def check_hazards(seq, fix=False, start=0):
    out = list(seq[:start]); bad = []
    for q in seq[start:]:
        need = 0; dist = 0
        for p in reversed(out):
            if dist >= 8: break
            w = need_ws(p, q)
            if w > dist: need = max(need, w - dist); bad.append((p, q, w, dist))
            dist += states(p)
        if need and fix:
            out.append(I(f"s_nop {need-1}", 'nop'))
        out.append(q)
    return out if fix else bad

class Clock:
    def __init__(s): s.t = 0; s.pipe = 0; s.prev = None; s.free = False; s.lastvec = None
    def peek_pen(s, i):
        return 8 if (i.cls in MEM and s.lastvec in ('valu', 'perm', 'trans')) else 0
    def issue(s, i):
        if i.cls == 'label': return s.t
        if i.cls == 'mfma':
            st = max(s.t, s.pipe); s.t = st + 8; s.pipe = st + 16; s.free = True; s.lastvec = 'mfma'; return st
        if i.cls in SCAL:
            n = states(i)
            if s.free: n -= 1
            s.free = False
            st = s.t; s.t += 4 * n; return st
        st = s.t + s.peek_pen(i); s.t = st + cost(i); s.free = False; s.lastvec = i.cls; return st

def estimate(seq):
    c = Clock()
    for i in seq: c.issue(i)
    return max(c.t, c.pipe)

def build_deps(prog):
    lastw = {}; readers = {}
    preds = [set() for _ in prog]
    for j, q in enumerate(prog):
        for r in q.rd:
            if r in lastw: preds[j].add(lastw[r])
        for r in q.wr:
            if r in lastw: preds[j].add(lastw[r])
            for k in readers.get(r, ()): preds[j].add(k)
        for r in q.rd: readers.setdefault(r, []).append(j)
        for r in q.wr: lastw[r] = j; readers[r] = []
        preds[j].discard(j)
    return preds

DS_LAT = 128

def schedule(prog, ds_per_gap=2, max_over=1, verbose=False):
    n = len(prog); preds = build_deps(prog)
    mf = [j for j in range(n) if prog[j].cls == 'mfma']
    for a, b in zip(mf, mf[1:]): preds[b].add(a)
    vm = [j for j in range(n) if prog[j].cls in ('dma', 'vst', 'vld')]
    succ = [[] for _ in prog]
    for j in range(n):
        for p in preds[j]: succ[p].append(j)
    INF = len(mf) + 1000
    idx = {j: k for k, j in enumerate(mf)}
    dl = [INF] * n
    for j in reversed(range(n)):
        if j in idx: dl[j] = idx[j]; continue
        d = INF
        for s_ in succ[j]:
            lat = 0
            if prog[j].cls == 'ds' and set(prog[j].wr) & set(prog[s_].rd): lat = DS_LAT / 16
            d = min(d, dl[s_] - lat)
        dl[j] = d
    done = [False] * n; when = [0] * n; pos = [0] * n
    out = []; clk = Clock(); nst = [0]
    left = set(j for j in range(n) if j not in idx)
    def ready(j, strict=True):
        q = prog[j]
        for p in preds[j]:
            if not done[p]: return False
            if strict:
                if nst[0] - pos[p] - 1 < need_ws(prog[p], q): return False
                if prog[p].cls == 'ds' and set(prog[p].wr) & set(q.rd) and clk.t < when[p] + DS_LAT: return False
        return True
    def emit(j):
        when[j] = clk.issue(prog[j]); pos[j] = nst[0]; nst[0] += states(prog[j]); done[j] = True
        out.append(prog[j]); left.discard(j)
    def cands(classes, gap, strict=True):
        c = [j for j in left if prog[j].cls in classes and prog[j].at <= gap and ready(j, strict)]
        c.sort(key=lambda j: (dl[j], j)); return c
    def fill_one(gap, force=False):
        for strict in (True, False):
            c = cands(MEM + VEC4 + ('trans',) + SCAL, gap if not force else 10**9, strict)
            if c:
                emit(c[0]); return True
            if not force: return False
        return False
    for k, m in enumerate(mf):
        guard = 0
        while not ready(m):
            pend = [p for p in preds[m] if not done[p]]
            if not fill_one(k, force=bool(pend)):
                if pend: raise RuntimeError(f"deadlock before mfma {k}: {prog[m]} waits {[prog[p] for p in pend]}")
                break
            guard += 1
        emit(m); gap = k + 1
        sc = [j for j in cands(SCAL, gap) if not (prog[j].late and dl[j] > gap + 1 and prog[j].at <= 0)]
        if sc: emit(sc[0])
        nds = 0
        while clk.t < clk.pipe:
            rem = clk.pipe - clk.t
            mem = cands(MEM, gap) if clk.lastvec not in ('valu', 'perm', 'trans') else []
            v4 = cands(VEC4, gap); tr = cands(('trans',), gap)
            pick = None
            if mem and nds < ds_per_gap and (nds == 0 or not v4) and (v4 or len(mem) > 1 or nds or not tr or dl[mem[0]] <= gap + 2):
                pick = mem[0]; nds += 1
            elif rem >= 8:
                if tr and (len(v4) < 2 or (dl[tr[0]], tr[0]) < (dl[v4[0]], v4[0])): pick = tr[0]
                elif v4: pick = v4[0]
            else:
                if v4: pick = v4[0]
                elif tr: pick = tr[0]
            if pick is None: break
            emit(pick)
        over = sum(cost(prog[j]) for j in left if prog[j].cls not in SCAL) - 8 * (len(mf) - gap)
        nov = 0
        while over > 0 and nov < max_over:
            v4 = cands(VEC4, gap); tr = cands(('trans',), gap)
            if len(v4) + len(tr) < 3 and gap < len(mf) - 3: break
            c = sorted(v4 + (tr if over >= 8 else []), key=lambda j: (dl[j], j))
            if not c: break
            over -= cost(prog[c[0]]); emit(c[0]); nov += 1
    while left:
        if not fill_one(10**9, force=True):
            raise RuntimeError("deadlock at end: " + str([prog[j] for j in left][:5]))
    return out

def legalize(seq, lgkm_in=(), vm_in=(), hoist=True):
    out = []
    lg = [set(x) for x in lgkm_in]; vm = [set(x) for x in vm_in]
    def place(kind, nleft):
        p = len(out); n = nleft
        cls = ('ds', 'dsw') if kind == 'lgkm' else ('dma', 'vst', 'vld')
        if hoist:
            q = p; m = n
            while q > 0 and p - q < 6:
                i = out[q-1]
                if i.cls == 'mfma':
                    if q == len(out) or out[q].cls not in SCAL: p, n = q, m
                    elif out[q].cls == 'wait' and out[q].grp != kind and out[q].grp != 'both':
                        out[q] = I(out[q].txt + (f" lgkmcnt({min(m,15)})" if kind == 'lgkm' else ""), 'wait', grp='both') if kind == 'lgkm' else \
                                 I(f"s_waitcnt vmcnt({min(m,63)}) " + out[q].txt.split(' ', 1)[1], 'wait', grp='both')
                        return
                    break
                if i.cls in ('label', 'br', 'bar'): break
                if i.cls in cls:
                    if m == 0: break
                    m -= 1
                q -= 1
        txt = f"s_waitcnt lgkmcnt({min(n,15)})" if kind == 'lgkm' else f"s_waitcnt vmcnt({min(n,63)})"
        out.insert(p, I(txt, 'wait', grp=kind))
    for q in seq:
        touch = set(q.rd) | set(q.wr)
        if q.cls == 'wait':
            parts = []
            for kind, lst, mx in (('vm', vm, 63), ('lgkm', lg, 15)):
                hit = [k for k, s_ in enumerate(lst) if s_ & touch]
                if hit:
                    k = max(hit); parts.append(f"{kind}cnt({min(len(lst)-1-k, mx)})"); del lst[:k + 1]
            if parts: out.append(I("s_waitcnt " + " ".join(parts), 'wait', grp='both'))
            continue
        for kind, lst in (('vm', vm), ('lgkm', lg)):
            hit = [k for k, s_ in enumerate(lst) if s_ & touch]
            if kind == 'lgkm' and q.cls == 'ds':
                hit = [k for k, s_ in enumerate(lst) if s_ & set(q.rd)]
            if kind == 'vm' and q.cls in ('dma',):
                hit = [k for k, s_ in enumerate(lst) if s_ & set(q.rd)]
            if hit:
                k = max(hit); nleft = len(lst) - 1 - k
                place(kind, nleft); del lst[:k + 1]
        out.append(q)
        if q.cls in ('ds', 'dsw'): lg.append(set(q.wr))
        if q.cls in ('dma', 'vst', 'vld'): vm.append(set(q.wr))
    out = check_hazards(out, fix=True)
    return out, lg, vm

def text(seq):
    s = []
    for i in seq:
        s.append(i.txt + ":" if i.cls == 'label' else "    " + i.txt)
    return "\n".join(s) + "\n"

def ideal(seq):
    return sum(cost(i) for i in seq if i.cls not in SCAL and i.cls != 'label')
```

```python
CU = [0, 1918, 2650, 4254, 4580, 5262, 6323, 6815, 7972]

def make_jobs():
    jobs = []
    for i in range(8):
        s, e = CU[i], CU[i+1]; L = e - s
        a = -(-(L % 128) // 32) * 32 or 128
        jobs.append(dict(seq=i, t0=0, nfull=0, store_end=min(s + a, e)))
        t0 = a
        while t0 < L:
            jobs.append(dict(seq=i, t0=t0, nfull=t0 // 32, store_end=min(s + t0 + 128, e)))
            t0 += 128
    return jobs

def enc(j):
    s, e = CU[j['seq']], CU[j['seq'] + 1]
    nf = j['nfull']
    if nf == 0: mode, nt, vb = 3, 3, s - 64
    elif nf == 1: mode, nt, vb = 2, 3, s - 32
    elif nf % 2: mode, nt, vb = 1, (nf + 5) // 2, s - 32
    else: mode, nt, vb = 0, (nf + 4) // 2, s
    w0 = ((s + j['t0']) * 4096) | nt | (mode << 8)
    return [w0, (vb * 2048) & 0xffffffff, e * 2048 - 1792, j['store_end'] * 4096 - 3584]

def cost(j, ovh=3.8):
    return max(j['nfull'], 1) + ovh

def pack(jobs, nslot=32):
    slots = [[] for _ in range(nslot)]; load = [0.0] * nslot
    for j in sorted(jobs, key=lambda j: -cost(j)):
        k = min(range(nslot), key=lambda k: load[k])
        slots[k].append(j); load[k] += cost(j)
    return slots, load

if __name__ == "__main__":
    js = make_jobs(); print(len(js), sum(j['nfull'] for j in js))
    sl, ld = pack(js)
    for s, l in zip(sl, ld): print(round(l, 1), [(j['seq'], j['nfull']) for j in s])
```

```python
import sys, struct, math
from ir import *
import jobs as J

NAME = "standalone__ragged_sequences_varlen_flash_attn__ragged_kernel"
OPT = dict(ldq="nt", ldkv="", st="", stamp=False)

O_, S_, PA, PB, PC, TRI = 0, 128, 160, 176, 192, 208
vK, vV0, vV1, vDK, vDV, vDQ0, vDQ1, vQ, vST = 212, 213, 214, 215, 216, 217, 218, 219, 220
vINV, vT = 224, 228
Q_, K0, V0_, L_, ONES, K1, V1_ = 0, 64, 96, 128, 144, 148, 180
sQ, sK0, sK1, sV, sO = 8, 12, 16, 20, 24
sC, sW, sCNT, sWR, sDL, sRD, sVO, sVO1, sKO1, sW2K = 28, 29, 30, 31, 32, 33, 34, 35, 36, 37
sQA, sQB = 38, 39
sJ = 40
sH0, sFAIL, sBIT, sNEG, sLO, sRNG, sQL, sMODE, sNA, sNB, sKD = 72, 73, 74, 75, 76, 77, 78, 79, 80, 81, 82
sBAD, sCM, sT = 84, 86, 88
LK, LV, LQ = 0, 49152, 98304

uid = [0]
def tok(p):
    uid[0] += 1; return f"#{p}{uid[0]}"

def srd(b): return R('s', b, 4)

class Blk:
    def __init__(s): s.p = []; s.reads = []; s.gate = []
    def add(s, *i): s.p.extend(i)
    def kread(s, kbuf, half, kbs=(0, 1), at=0, step=1):
        n = 0
        for kb in kbs:
            for st in range(4):
                t = tok('r'); s.reads.append(t); d = kbuf + kb * 16 + st * 4
                s.add(I(f"ds_read_b128 {rs('a',d,4)}, v{vK} offset:{half*8192+kb*4096+st*512}", 'ds',
                        rd=[f"v{vK}"] + s.gate, wr=R('a', d, 4) + [t], at=at + n * step)); n += 1
    def vread(s, vbuf, half, at=0):
        for db in range(8):
            for u in range(2):
                t = tok('r'); s.reads.append(t); d = vbuf + db * 4 + u * 2; va = vV1 if db & 1 else vV0
                s.add(I(f"ds_read_b64_tr_b16 {rs('a',d,2)}, v{va} offset:{half*8192+u*4096+(db//2)*512}", 'ds',
                        rd=[f"v{va}"] + s.gate, wr=R('a', d, 2) + [t], at=at))
    def qread(s, qb, dep):
        for st in range(4):
            d = Q_ + qb * 16 + st * 4
            s.add(I(f"ds_read_b128 {rs('a',d,4)}, v{vQ} offset:{qb*4096+st*512}", 'ds',
                    rd=[f"v{vQ}"] + dep, wr=R('a', d, 4)))
    def qk(s, kbuf, blocks, pout):
        flip = False; sm = []
        for kb, qb, kind in blocks:
            p = pout + qb * 4 + kb * 2; d = S_ + kb * 16 + qb * 4
            if kind == 'zero':
                for e in range(2): sm.append(valu(f"v_mov_b32 v{p+e}, 0", [], [f"v{p+e}"]))
                continue
            order = [3, 2, 1, 0] if flip else [0, 1, 2, 3]; flip = not flip
            for n, st in enumerate(order):
                c = None if n else ('z' if kind == 'full' else TRI)
                s.add(mfma('v', d, 'a', kbuf + kb * 16 + st * 4, 'a', Q_ + qb * 16 + st * 4, c))
            for e in range(2):
                a, b = d + 2 * e, d + 2 * e + 1
                sm += [valu(f"v_mul_f32 v{a}, s{sC}, v{a}", [f"v{a}"], [f"v{a}"]),
                       valu(f"v_mul_f32 v{b}, s{sC}, v{b}", [f"v{b}"], [f"v{b}"]),
                       I(f"v_exp_f32 v{a}, v{a}", 'trans', [f"v{a}"], [f"v{a}"]),
                       I(f"v_exp_f32 v{b}, v{b}", 'trans', [f"v{b}"], [f"v{b}"]),
                       valu(f"v_cvt_pk_bf16_f32 v{p+e}, v{a}, v{b}", [f"v{a}", f"v{b}"], [f"v{p+e}"])]
        return sm
    def pv(s, vbuf, qbs, pin, first=False):
        c = 'z' if first else None
        qs = list(qbs)
        for qb in qs: s.add(mfma('a', L_ + qb * 4, 'a', ONES, 'v', pin + qb * 4, c))
        for db in range(8):
            qs = qs[::-1]
            for qb in qs: s.add(mfma('v', O_ + qb * 32 + db * 4, 'a', vbuf + db * 4, 'v', pin + qb * 4, c))
    def barrier(s, certify, at=0, kdelta=None):
        t = tok('b'); w = tok('w')
        s.add(I("WAIT", 'wait', rd=list(certify) + s.reads + s.gate, wr=[w], at=max(at - 1, 0)))
        s.add(I("s_barrier", 'bar', rd=[w], wr=[t], at=at))
        s.reads = []; s.gate = [t]
    def wait(s, regs, at=0):
        s.add(I("WAIT", 'wait', rd=list(regs), wr=list(regs), at=at))
    def rotate(s, kd=sDL):
        s.add(salu(f"s_add_u32 s{sWR}, s{sRD}, s{sW2K}", [f"s{sRD}"], [f"s{sWR}", 'scc']),
              salu(f"s_cmp_eq_u32 s{sRD}, 0x8000", [f"s{sRD}"], ['scc']),
              salu(f"s_cselect_b32 s{sDL}, s{sNEG}, 0x4000", ['scc'], [f"s{sDL}"]),
              salu(f"s_add_u32 s{sRD}, s{sRD}, s{sDL}", [f"s{sRD}", f"s{sDL}"], [f"s{sRD}", 'scc']))
        if kd != sDL:
            s.add(salu(f"s_add_u32 s{kd}, s{kd}, s{sDL}", [f"s{kd}", f"s{sDL}"], [f"s{kd}", 'scc']))
        s.add(valu(f"v_add_u32 v{vK}, s{kd}, v{vK}", [f"s{kd}", f"v{vK}"], [f"v{vK}"]))
        for r in (vV0, vV1):
            s.add(valu(f"v_add_u32 v{r}, s{sDL}, v{r}", [f"s{sDL}", f"v{r}"], [f"v{r}"]))
    def dma1(s, base, ldsoff, imm, vo, sr, so, fl, t, at=0):
        s.add(salu(f"s_add_u32 m0, s{base}, {ldsoff-imm}", [f"s{base}"], ['m0', 'scc'], at=max(at - 1, 0)),
              I(f"buffer_load_dwordx4 v{vo}, {rs('s',sr,4)}, s{so} offen offset:{imm} {fl} lds".replace("  ", " "), 'dma',
                rd=['m0', f"v{vo}", f"s{so}"] + srd(sr) + s.gate, wr=[t], at=at))
    def tile_dma(s, t, last=None, clamp=False, at=0, step=0):
        fl = OPT['ldkv']
        s.add(salu(f"s_add_u32 s{sVO1}, s{sVO}, 0x10000", [f"s{sVO}"], [f"s{sVO1}", 'scc']),
              salu(f"s_add_u32 s{sKO1}, s{sVO}, 0x20000", [f"s{sVO}"], [f"s{sKO1}", 'scc']))
        vo = sVO
        if clamp:
            vo = sT
            s.add(salu(f"s_max_i32 s{sT}, s{sVO}, 0", [f"s{sVO}"], [f"s{sT}", 'scc']),
                  salu(f"s_max_i32 s{sVO1}, s{sVO1}, 0", [f"s{sVO1}"], [f"s{sVO1}", 'scc']))
        if last is True:
            s.add(salu(f"s_mov_b32 s{sKO1}, s{sH0}", [f"s{sH0}"], [f"s{sKO1}"]),
                  salu(f"s_mov_b32 s{sK1+2}, s{sJ+6}", [f"s{sJ+6}"], [f"s{sK1+2}"]))
        elif last is not None:
            s.add(salu(f"s_cmp_eq_u32 s{sCNT}, {last}", [f"s{sCNT}"], ['scc']),
                  salu(f"s_cselect_b32 s{sKO1}, s{sH0}, s{sKO1}", ['scc', f"s{sH0}", f"s{sKO1}"], [f"s{sKO1}"]),
                  salu(f"s_cselect_b32 s{sK1+2}, s{sJ+6}, s{sK0+2}", ['scc', f"s{sJ+6}", f"s{sK0+2}"], [f"s{sK1+2}"]))
        n = 0
        for (lds, vreg, sr, so) in ((LK, vDK, sK0, sVO1), (LV, vDV, sV, vo), (LK + 8192, vDK, sK1, sKO1), (LV + 8192, vDV, sV, sVO1)):
            for hb in range(2):
                s.dma1(sWR, lds + hb * 1024, hb * 128, vreg, sr, so, fl, t, at=at + n * step); n += 1
        s.add(salu(f"s_add_u32 s{sVO}, s{sVO}, 0x20000", [f"s{sVO}"], [f"s{sVO}", 'scc']))
    def q_dma(s, toks, sa, sb, at=0, step=0):
        g = s.gate; s.gate = []; n = 0
        for qb in range(4):
            for rg in range(2):
                for hb in range(2):
                    s.dma1(sQL, qb * 4096 + rg * 2048 + hb * 1024, (qb & 1) * 256 + hb * 128, vDQ1 if rg else vDQ0, sQ,
                           sb if qb >= 2 else sa, OPT['ldq'], toks[qb], at=at + n * step); n += 1
        s.gate = g
    def epilogue(s, qb):
        inv = vINV + qb; t = vT + qb
        s.add(valu(f"v_accvgpr_read_b32 v{t}, a{L_+qb*4}", [f"a{L_+qb*4}"], [f"v{t}"]),
              I(f"v_rcp_f32 v{inv}, v{t}", 'trans', [f"v{t}"], [f"v{inv}"]),
              valu(f"v_subrev_u32 v{t}, s{sLO}, v{t}", [f"v{t}"], [f"v{t}"]),
              valu(f"v_cmp_le_u32 s[{sCM}:{sCM+1}], s{sRNG}, v{t}", [f"v{t}"], R('s', sCM, 2)),
              salu(f"s_or_b64 s[{sBAD}:{sBAD+1}], s[{sBAD}:{sBAD+1}], s[{sCM}:{sCM+1}]", R('s', sCM, 2) + R('s', sBAD, 2), R('s', sBAD, 2) + ['scc']))
        so = sQB if qb >= 2 else sQA
        for m in range(4):
            o = O_ + qb * 32 + m * 8
            for e in range(8): s.add(valu(f"v_mul_f32 v{o+e}, v{inv}, v{o+e}", [f"v{inv}", f"v{o+e}"], [f"v{o+e}"]))
            for e in range(4): s.add(valu(f"v_cvt_pk_bf16_f32 v{o+e}, v{o+2*e}, v{o+2*e+1}", [f"v{o+2*e}", f"v{o+2*e+1}"], [f"v{o+e}"]))
            for e in range(2): s.add(I(f"v_permlane16_swap_b32 v{o+e}, v{o+2+e}", 'perm', [f"v{o+e}", f"v{o+2+e}"], [f"v{o+e}", f"v{o+2+e}"]))
            s.add(I(f"buffer_store_dwordx4 {rs('v',o,4)}, v{vST}, {rs('s',sO,4)}, s{so} offen offset:{(qb&1)*256+m*64} {OPT['st']}".rstrip(), 'vst',
                    rd=R('v', o, 4) + [f"v{vST}", f"s{so}"] + srd(sO), wr=[]))

FULL = [(kb, qb, 'full') for kb in range(2) for qb in range(4)]
KIN = []

def ms(kind, first=False):
    b = Blk(); A = kind == 'A'
    pin = PC if first else (PA if A else PB); pout = PB if A else PA
    if first and not A:
        b.add(valu(f"v_subrev_u32 v{vK}, 0x2000, v{vK}", [f"v{vK}"], [f"v{vK}"]))
    b.vread(V0_, 0 if A else 1)
    if A: b.tile_dma('#t2', last=(0 if first else 1), at=10, step=6)
    elif first: b.tile_dma('#t2', at=8, step=3)
    sm = b.qk(K0, FULL, pout); b.add(*sm)
    if not A:
        b.rotate(); b.barrier(['#t1'], at=33)
    else: b.wait(R('a', V0_, 32), at=33)
    b.pv(V0_, range(4), pin, first)
    b.kread(K0, 1 if A else 0, at=36, step=3)
    b.wait(R('a', K0, 32), at=66)
    if A and not first:
        b.add(salu(f"s_sub_u32 s{sCNT}, s{sCNT}, 1", [f"s{sCNT}"], [f"s{sCNT}", 'scc'], at=60))
    vm_in = [['#t1']] * 8 + ([] if (A or first) else [['#t2']] * 8)
    return b.p, KIN, vm_in

def diag(tb, i):
    if 2 * i > tb: return None
    k0 = 'tri' if 2 * i == tb else 'full'
    k1 = 'zero' if 2 * i + 1 > tb else ('tri' if 2 * i + 1 == tb else 'full')
    return k0, k1

def next_params(b):
    for k in range(0, 28, 2):
        b.add(salu(f"s_mov_b64 s[{sJ+k}:{sJ+k+1}], s[{sJ+k+4}:{sJ+k+5}]", R('s', sJ + k + 4, 2), R('s', sJ + k, 2)))
    cur_params(b)
def cur_params(b):
    b.add(salu(f"s_mov_b32 s{sQA}, s{sNA}", [f"s{sNA}"], [f"s{sQA}"]),
          salu(f"s_mov_b32 s{sQB}, s{sNB}", [f"s{sNB}"], [f"s{sQB}"]),
          salu(f"s_mov_b32 s{sO+2}, s{sJ+3}", [f"s{sJ+3}"], [f"s{sO+2}"]),
          salu(f"s_and_b32 s{sCNT}, s{sJ}, 0xff", [f"s{sJ}"], [f"s{sCNT}", 'scc']),
          salu(f"s_sub_u32 s{sCNT}, s{sCNT}, 3", [f"s{sCNT}"], [f"s{sCNT}", 'scc']),
          salu(f"s_and_b32 s{sT+1}, s{sJ+4}, 0x300", [f"s{sJ+4}"], [f"s{sT+1}", 'scc']),
          salu(f"s_cselect_b32 s{sT+1}, 0x10000, 0", ['scc'], [f"s{sT+1}"]),
          salu(f"s_add_u32 s{sH0}, s{sJ+5}, s{sT+1}", [f"s{sJ+5}", f"s{sT+1}"], [f"s{sH0}", 'scc']),
          salu(f"s_max_i32 s{sH0}, s{sH0}, 0", [f"s{sH0}"], [f"s{sH0}", 'scc']))
def q_params(b, j):
    b.add(salu(f"s_and_b32 s{sT+2}, s{j}, 0xfffff000", [f"s{j}"], [f"s{sT+2}", 'scc']),
          salu(f"s_lshl_b32 s{sT+3}, s{sW}, 16", [], [f"s{sT+3}", 'scc']),
          salu(f"s_add_u32 s{sNA}, s{sT+2}, s{sT+3}", [f"s{sT+2}", f"s{sT+3}"], [f"s{sNA}", 'scc']),
          salu(f"s_sub_u32 s{sNB}, s{sT+2}, s{sT+3}", [f"s{sT+2}", f"s{sT+3}"], [f"s{sNB}", 'scc']),
          salu(f"s_add_u32 s{sNB}, s{sNB}, 0x70000", [f"s{sNB}"], [f"s{sNB}", 'scc']),
          salu(f"s_mov_b32 s{sQ+2}, s{j+3}", [f"s{j+3}"], [f"s{sQ+2}"]),
          salu(f"s_bfe_u32 s{sMODE}, s{j}, 0x20008", [f"s{j}"], [f"s{sMODE}", 'scc']),
          salu(f"s_cselect_b32 s{sKD}, 0x2000, 0", ['scc'], [f"s{sKD}"]))
def kv_switch(b, j):
    b.add(salu(f"s_mov_b32 s{sVO}, s{j+1}", [f"s{j+1}"], [f"s{sVO}"]))
    for r in (sK0, sK1, sV):
        b.add(salu(f"s_mov_b32 s{r+2}, s{j+2}", [f"s{j+2}"], [f"s{r+2}"]))
def fail_note(b):
    b.add(salu(f"s_cmp_lg_u64 s[{sBAD}:{sBAD+1}], 0", R('s', sBAD, 2), ['scc']),
          salu(f"s_cselect_b32 s{sT+4}, s{sBIT}, 0", ['scc', f"s{sBIT}"], [f"s{sT+4}"]),
          salu(f"s_or_b32 s{sFAIL}, s{sFAIL}, s{sT+4}", [f"s{sFAIL}", f"s{sT+4}"], [f"s{sFAIL}", 'scc']),
          salu(f"s_lshl_b32 s{sBIT}, s{sBIT}, 1", [f"s{sBIT}"], [f"s{sBIT}", 'scc']),
          salu(f"s_mov_b64 s[{sBAD}:{sBAD+1}], 0", [], R('s', sBAD, 2)))

def tail(w, merged):
    b = Blk(); tbs = {0: w, 1: w, 2: 7 - w, 3: 7 - w}
    act = lambda i: [qb for qb in range(4) if diag(tbs[qb], i)]
    def blocks(i):
        return [(kb, qb, diag(tbs[qb], i)[kb]) for kb in range(2) for qb in act(i)]
    def kbs(i): return [kb for kb in range(2) if any(k == kb and kind != 'zero' for k, _, kind in blocks(i))]
    qt = [tok('q') for _ in range(4)]
    kb_ = [K0, K1]; vb_ = [V0_, V1_]; pb_ = [PA, PB]
    lastqk = {qb: max(i for i in range(4) if qb in act(i)) for qb in range(4)}
    def after_qk(i):
        if merged:
            for qb in range(4):
                if lastqk[qb] == i: b.qread(qb, [qt[qb]])
    def after_pv(i):
        for qb in range(4):
            if lastqk[qb] == i: b.epilogue(qb)
    b.vread(V0_, 1)
    if merged:
        q_params(b, sJ + 4); b.q_dma(qt, sNA, sNB, at=8, step=2)
    b.add(*b.qk(K0, blocks(0), PA))
    b.rotate(); b.barrier(['#t1'])
    b.kread(K1, 0, kbs(1)); b.vread(V1_, 0)
    b.pv(V0_, range(4), PB)
    if merged:
        kv_switch(b, sJ + 4); b.tile_dma('#n0', clamp=True)
    b.add(*b.qk(K1, blocks(1), PB))
    b.kread(K0, 1, kbs(2)); b.vread(V0_, 1)
    b.pv(V1_, act(0), PA); after_qk(0); after_pv(0)
    b.add(*b.qk(K0, blocks(2), PA))
    b.rotate(); b.barrier(['#t2'])
    if act(3): b.kread(K1, 0, kbs(3))
    b.vread(V1_, 0)
    b.pv(V0_, act(1), PB); after_qk(1); after_pv(1)
    if merged: b.tile_dma('#n1')
    if act(3): b.add(*b.qk(K1, blocks(3), PB))
    if merged: b.kread(K0, 1)
    if act(3): b.vread(V0_, 1)
    after_qk(2); after_qk(3)
    nA = [(kb, qb, 'full') for kb in range(2) for qb in (0, 1)]
    nB = [(kb, qb, 'full') for kb in range(2) for qb in (2, 3)]
    if not act(3) and merged: b.add(*b.qk(K0, nA, PC))
    b.pv(V1_, act(2), PA); after_pv(2)
    if act(3):
        if merged: b.add(*b.qk(K0, nA, PC))
        b.pv(V0_, act(3), PB); after_pv(3)
    fail_note(b)
    if merged:
        b.add(*b.qk(K0, nB, PC))
        b.rotate(kd=sKD); b.barrier(['#n0'])
        b.kread(K0, 0)
        next_params(b)
        b.wait(R('a', K0, 32))
    return b.p, KIN, [['#t1']] * 8 + [['#t2']] * 8

def init_block():
    b = Blk()
    b.add(valu(f"v_subrev_u32 v{vK}, 0x2000, v{vK}", [f"v{vK}"], [f"v{vK}"]))
    b.tile_dma('#t2', last=True)
    b.add(salu(f"s_cmp_eq_u32 s{sMODE}, 2", [f"s{sMODE}"], ['scc']),
          salu(f"s_cselect_b32 s{sT+5}, -1, 0", ['scc'], [f"s{sT+5}"]))
    for e in range(16): b.add(valu(f"v_and_b32 v{PB+e}, s{sT+5}, v{PC+e}", [f"s{sT+5}", f"v{PC+e}"], [f"v{PB+e}"]))
    for e in range(0, 128, 2): b.add(valu(f"v_mov_b64 v[{O_+e}:{O_+e+1}], 0", [], R('v', O_ + e, 2)))
    for e in range(16): b.add(valu(f"v_accvgpr_write_b32 a{L_+e}, 0", [], [f"a{L_+e}"]))
    return b.p, KIN, [['#t1']] * 8

def f32(x): return struct.unpack('<I', struct.pack('<f', x))[0]

def prologue():
    t = f"""
    s_cmp_ge_u32 s2, 256
    s_cbranch_scc1 L_end
    s_getpc_b64 s[4:5]
L_pc:
    s_lshr_b32 s3, s2, 3
    s_lshl_b32 s3, s3, 7
    s_add_u32 s4, s4, s3
    s_addc_u32 s5, s5, 0
    s_add_u32 s4, s4, L_table-L_pc
    s_addc_u32 s5, s5, 0
    s_load_dwordx4 s[{sT}:{sT+3}], s[0:1], 0
    s_load_dwordx2 s[{sT+4}:{sT+5}], s[0:1], 16
    s_load_dwordx2 s[{sT+6}:{sT+7}], s[0:1], 32
    s_load_dwordx16 s[{sJ}:{sJ+15}], s[4:5], 0
    s_load_dwordx16 s[{sJ+16}:{sJ+31}], s[4:5], 64
    v_lshrrev_b32 v1, 6, v0
    v_and_b32 v0, 63, v0
    v_readfirstlane_b32 s{sW}, v1
    v_and_b32 v2, 3, v0                 ; pos / c8
    v_bfe_u32 v3, v0, 2, 3
    v_lshrrev_b32 v4, 5, v0             ; s2
    v_lshlrev_b32 v4, 6, v4
    s_lshl_b32 s{sW2K}, s{sW}, 11
    s_lshl_b32 s6, s{sW}, 14            ; w*8 rows*2048
    s_and_b32 s7, s{sW}, 1
    s_lshl_b32 s7, s7, 1
    v_lshl_add_u32 v5, v3, 11, v4
    v_add_u32 v5, s6, v5
    v_xor_b32 v6, s7, v2
    v_lshl_add_u32 v{vDK}, v6, 4, v5
    v_lshrrev_b32 v6, 2, v3
    v_lshlrev_b32 v6, 1, v6
    v_xor_b32 v6, v6, v2
    v_lshl_add_u32 v{vDV}, v6, 4, v5
    v_lshl_add_u32 v5, v3, 12, v4
    v_lshl_add_u32 v{vDQ0}, v2, 4, v5
    v_xor_b32 v6, 2, v2
    v_lshl_add_u32 v{vDQ1}, v6, 4, v5
    v_add_u32 v{vDQ1}, 0x8000, v{vDQ1}
    s_add_u32 s{sQL}, s6, {LQ}
    s_and_b32 s3, s2, 7
    s_lshl_b32 s7, s3, 9
    s_lshl_b32 s3, s3, 8
    s_mov_b32 s{sQ+3}, 0x20000
    s_mov_b32 s{sK0+3}, 0x20000
    s_mov_b32 s{sK1+3}, 0x20000
    s_mov_b32 s{sV+3}, 0x20000
    s_mov_b32 s{sO+3}, 0x20000
    s_mov_b32 s{sNEG}, 0xffff8000
    s_mov_b32 s{sRD}, 0x8000
    s_waitcnt lgkmcnt(0)
    s_add_u32 s{sQ}, s{sT}, s7
    s_addc_u32 s{sQ+1}, s{sT+1}, 0
    s_add_u32 s{sK0}, s{sT+2}, s3
    s_addc_u32 s{sK0+1}, s{sT+3}, 0
    s_mov_b32 s{sK1}, s{sK0}
    s_mov_b32 s{sK1+1}, s{sK0+1}
    s_add_u32 s{sV}, s{sT+4}, s3
    s_addc_u32 s{sV+1}, s{sT+5}, 0
    s_add_u32 s{sO}, s{sT+6}, s7
    s_addc_u32 s{sO+1}, s{sT+7}, 0
"""
    b = Blk()
    q_params(b, sJ); kv_switch(b, sJ)
    b.add(salu(f"s_lshl_b32 s{sT+1}, s{sKD}, 3", [f"s{sKD}"], [f"s{sT+1}", 'scc']),
          salu(f"s_add_u32 s{sT+1}, s{sT+1}, s{sVO}", [f"s{sT+1}", f"s{sVO}"], [f"s{sT+1}", 'scc']),
          salu(f"s_max_i32 s{sT+1}, s{sT+1}, 0", [f"s{sT+1}"], [f"s{sT+1}", 'scc']))
    for hb in range(2): b.dma1(sW2K, LK + 0x8000 + 8192 + hb * 1024, hb * 128, vDK, sK0, sT + 1, OPT['ldkv'], '#h0')
    qt = [tok('q') for _ in range(4)]
    b.q_dma(qt, sNA, sNB)
    b.add(salu(f"s_mov_b32 s{sWR}, s{sW2K}", [], [f"s{sWR}"]))
    b.tile_dma('#n0', clamp=True)
    b.add(salu(f"s_add_u32 s{sWR}, s{sW2K}, 0x4000", [], [f"s{sWR}", 'scc']))
    b.tile_dma('#n1')
    cur_params(b)
    seq1, _, vm = legalize(b.p, hoist=False)
    t2 = f"""
    s_mov_b32 s{sC}, {hex(f32(math.log2(math.e) / math.sqrt(128)))}
    s_mov_b32 s{sLO}, {hex(f32(2.0**-40))}
    s_mov_b32 s{sRNG}, {hex(f32(2.0**40) - f32(2.0**-40))}
    s_mov_b32 s{sFAIL}, 0
    s_mov_b32 s{sBIT}, 1
    s_mov_b64 s[{sBAD}:{sBAD+1}], 0
    v_lshrrev_b32 v3, 4, v0             ; g
    v_bfe_u32 v4, v0, 3, 1              ; (l%16)/8
    v_and_b32 v5, 7, v0
    v_lshlrev_b32 v6, 1, v4
    v_xor_b32 v6, v6, v3
    v_lshlrev_b32 v6, 4, v6
    v_lshl_add_u32 v6, v5, 6, v6
    v_lshl_add_u32 v6, v4, 11, v6       ; laneK
    v_add_u32 v{vK}, {LK+0x8000}, v6
    v_add_u32 v{vQ}, s{sQL}, v6
    v_lshrrev_b32 v4, 5, v0             ; g/2
    v_bfe_u32 v5, v0, 2, 3              ; 4*(g%2)+r
    v_and_b32 v6, 1, v3                 ; g%2
    v_lshlrev_b32 v7, 3, v2
    v_lshl_add_u32 v7, v5, 6, v7
    v_lshl_add_u32 v7, v4, 11, v7
    v_add_u32 v7, {LV+0x8000}, v7
    v_lshl_add_u32 v{vV0}, v6, 5, v7
    v_xor_b32 v{vV1}, 32, v{vV0}
    v_and_b32 v5, 15, v0                ; q
    v_lshlrev_b32 v7, 4, v4
    v_lshl_add_u32 v7, v6, 5, v7
    v_lshl_add_u32 v{vST}, v5, 12, v7
    v_lshlrev_b32 v3, 2, v3
    v_sub_u32 v5, v5, v3                ; q - 4g
    v_mov_b32 v7, 0xff800000
    v_mov_b32 v6, 0x3f803f80
"""
    for r in range(4):
        t2 += f"    v_cmp_gt_i32 vcc, {r}, v5\n    v_accvgpr_write_b32 a{ONES+r}, v6\n    s_nop 0\n    v_cndmask_b32 v{TRI+r}, 0, v7, vcc\n"
    b = Blk()
    b.barrier(['#h0'])
    b.kread(K0, 1)
    for qb in range(4):
        b.qread(qb, [qt[qb]])
    b.add(*b.qk(K0, [(kb, qb, 'full') for qb in range(4) for kb in range(2)], PC))
    b.rotate(kd=sKD); b.barrier(['#n0'], at=32)
    b.kread(K0, 0)
    b.wait(R('a', K0, 32))
    seq2, lg, vm2 = legalize(schedule(b.p), vm_in=vm)
    return t + text(seq1) + t2, seq2

def build(p, lg, vm, name, sched=True):
    seq = schedule(p) if sched else p
    seq, lo, vo = legalize(seq, lg, vm)
    nm = sum(i.cls == 'mfma' for i in seq); nn = sum(states(i) for i in seq if i.cls == 'nop')
    print(f"; {name}: {len(seq)} instrs, {nm} mfma, est {estimate(seq)} cyc (ideal {ideal(seq)}), nops {nn}, waits {sum(i.cls=='wait' for i in seq)}, lgkm_out {len(lo)} vm_out {len(vo)}", file=sys.stderr)
    return seq

def br(txt): return I(txt, 'br')
def lab(n): return I(n, 'label')

def dispatch_mode():
    return [salu(f"s_cmp_eq_u32 s{sMODE}, 0", [f"s{sMODE}"], ['scc']), br("s_cbranch_scc1 L_Fe"),
            salu(f"s_cmp_eq_u32 s{sMODE}, 1", [f"s{sMODE}"], ['scc']), br("s_cbranch_scc1 L_Fo"), br("s_branch L_init")]

def kernel(slots):
    pre, p0 = prologue()
    B = {}
    B['P0'] = p0 + dispatch_mode()
    B['Fe'] = build(*ms('A', True), 'Fe') + [salu(f"s_cmp_eq_u32 s{sCNT}, 0", [], ['scc']), br("s_cbranch_scc1 L_tail")]
    B['B'] = build(*ms('B'), 'msB')
    B['A'] = build(*ms('A'), 'msA') + [salu(f"s_cmp_lg_u32 s{sCNT}, 0", [], ['scc']), br("s_cbranch_scc1 L_B")]
    B['tail'] = [salu(f"s_cmp_eq_u32 s{sJ+4}, 0", [], ['scc']), br("s_cbranch_scc1 L_fin")]
    for w in (1, 2, 3): B['tail'] += [salu(f"s_cmp_eq_u32 s{sW}, {w}", [], ['scc']), br(f"s_cbranch_scc1 L_T{w}")]
    for w in range(4): B[f'T{w}'] = build(*tail(w, True), f'T{w}') + dispatch_mode()
    B['Fo'] = build(*ms('B', True), 'Fo') + [br("s_branch L_A")]
    B['init'] = build(*init_block(), 'init', sched=False) + [br("s_branch L_tail")]
    B['fin'] = []
    for w in (1, 2, 3): B['fin'] += [salu(f"s_cmp_eq_u32 s{sW}, {w}", [], ['scc']), br(f"s_cbranch_scc1 L_U{w}")]
    for w in range(4): B[f'U{w}'] = build(*tail(w, False), f'U{w}') + [br("s_branch L_done")]
    ent = ['P0'] + [f'T{w}' for w in range(4)]
    edges = [(a, x) for a in ent for x in ('Fe', 'Fo', 'init')] + [('Fe', 'B'), ('B', 'A'), ('A', 'B'), ('Fo', 'A')]
    edges += [(a, f'{x}{w}') for a in ('Fe', 'A', 'init') for x in 'TU' for w in range(4)]
    for a, x in edges:
        pa = [i for i in B[a] if i.cls not in ('br',)][-16:]
        bad = check_hazards(pa + B[x][:16], start=len(pa))
        assert not bad, (a, x, bad)
    order = ['P0', 'Fe', 'B', 'A', 'tail', 'T0', 'T1', 'T2', 'T3', 'Fo', 'init', 'fin', 'U0', 'U1', 'U2', 'U3']
    s = f"""; varlen causal GQA flash attention, generated by gen/gen.py (hand-written generator)
; @launch grid=(256,1,1) block=(256,1,1) lds=163840
.amdgcn_target "amdgcn-amd-amdhsa--gfx950"
.text
.globl {NAME}
.p2align 8
.type {NAME},@function
{NAME}:
""" + pre
    for k in order:
        s += f"L_{k}:\n" + text(B[k])
    s += "L_done:\nL_end:\n    s_endpgm\n.p2align 7\nL_table:\n"
    for sl in slots:
        assert len(sl) <= 7
        w = sum((J.enc(j) for j in sl), []); w += [0] * (32 - len(w))
        s += "    .long " + ", ".join(hex(x) for x in w) + "\n"
    s += f""".section .rodata,"a"
.p2align 6
.amdhsa_kernel {NAME}
  .amdhsa_next_free_vgpr 512
  .amdhsa_next_free_sgpr 102
  .amdhsa_accum_offset 256
  .amdhsa_group_segment_fixed_size 0
  .amdhsa_kernarg_size 56
  .amdhsa_user_sgpr_count 2
  .amdhsa_user_sgpr_kernarg_segment_ptr 1
  .amdhsa_system_sgpr_workgroup_id_x 1
.end_amdhsa_kernel
"""
    return s

if __name__ == "__main__":
    out = sys.argv[1] if len(sys.argv) > 1 else "standalone__ragged_sequences_varlen_flash_attn__ragged.s"
    for a in sys.argv[2:]:
        k, v = a.split('='); OPT[k] = v
    slots, _ = J.pack(J.make_jobs())
    open(out, "w").write(kernel(slots))
```

```python
import sys, struct, math
from ir import *
import jobs as J

NAME = "standalone__ragged_sequences_varlen_flash_attn__ragged_kernel"
OPT = dict(ldq="nt", ldkv="", st="", stamp=False)

O_, S_, PA, PB, PC, TRI = 0, 128, 160, 176, 192, 208
vK, vV0, vV1, vDK, vDV, vDQ0, vDQ1, vQ, vST = 212, 213, 214, 215, 216, 217, 218, 219, 220
vINV, vT = 224, 228
Q_, K0, V0_, L_, ONES, K1, V1_ = 0, 64, 96, 128, 144, 148, 180
sQ, sK0, sK1, sV, sO = 8, 12, 16, 20, 24
sC, sW, sCNT, sWR, sDL, sRD, sVO, sVO1, sKO1, sW2K = 28, 29, 30, 31, 32, 33, 34, 35, 36, 37
sQA, sQB = 38, 39
sJ = 40
sH0, sFAIL, sBIT, sNEG, sLO, sRNG, sQL, sMODE, sNA, sNB, sKD = 72, 73, 74, 75, 76, 77, 78, 79, 80, 81, 82
sBAD, sCM, sT = 84, 86, 88
LK, LV, LQ = 0, 49152, 98304

uid = [0]
def tok(p):
    uid[0] += 1; return f"#{p}{uid[0]}"

def srd(b): return R('s', b, 4)

class Blk:
    def __init__(s): s.p = []; s.reads = []; s.gate = []
    def add(s, *i): s.p.extend(i)
    def kread(s, kbuf, half, kbs=(0, 1), at=0, step=1):
        n = 0
        for kb in kbs:
            for st in range(4):
                t = tok('r'); s.reads.append(t); d = kbuf + kb * 16 + st * 4
                s.add(I(f"ds_read_b128 {rs('a',d,4)}, v{vK} offset:{half*8192+kb*4096+st*512}", 'ds',
                        rd=[f"v{vK}"] + s.gate, wr=R('a', d, 4) + [t], at=at + n * step)); n += 1
    def vread(s, vbuf, half, at=0):
        for db in range(8):
            for u in range(2):
                t = tok('r'); s.reads.append(t); d = vbuf + db * 4 + u * 2; va = vV1 if db & 1 else vV0
                s.add(I(f"ds_read_b64_tr_b16 {rs('a',d,2)}, v{va} offset:{half*8192+u*4096+(db//2)*512}", 'ds',
                        rd=[f"v{va}"] + s.gate, wr=R('a', d, 2) + [t], at=at))
    def qread(s, qb, dep):
        for st in range(4):
            d = Q_ + qb * 16 + st * 4
            s.add(I(f"ds_read_b128 {rs('a',d,4)}, v{vQ} offset:{qb*4096+st*512}", 'ds',
                    rd=[f"v{vQ}"] + dep, wr=R('a', d, 4)))
    def qk(s, kbuf, blocks, pout):
        flip = False; sm = []
        for kb, qb, kind in blocks:
            p = pout + qb * 4 + kb * 2; d = S_ + kb * 16 + qb * 4
            if kind == 'zero':
                for e in range(2): sm.append(valu(f"v_mov_b32 v{p+e}, 0", [], [f"v{p+e}"]))
                continue
            order = [3, 2, 1, 0] if flip else [0, 1, 2, 3]; flip = not flip
            for n, st in enumerate(order):
                c = None if n else ('z' if kind == 'full' else TRI)
                s.add(mfma('v', d, 'a', kbuf + kb * 16 + st * 4, 'a', Q_ + qb * 16 + st * 4, c))
            for e in range(2):
                a, b = d + 2 * e, d + 2 * e + 1
                sm += [valu(f"v_mul_f32 v{a}, s{sC}, v{a}", [f"v{a}"], [f"v{a}"]),
                       valu(f"v_mul_f32 v{b}, s{sC}, v{b}", [f"v{b}"], [f"v{b}"]),
                       I(f"v_exp_f32 v{a}, v{a}", 'trans', [f"v{a}"], [f"v{a}"]),
                       I(f"v_exp_f32 v{b}, v{b}", 'trans', [f"v{b}"], [f"v{b}"]),
                       valu(f"v_cvt_pk_bf16_f32 v{p+e}, v{a}, v{b}", [f"v{a}", f"v{b}"], [f"v{p+e}"])]
        return sm
    def pv(s, vbuf, qbs, pin, first=False):
        c = 'z' if first else None
        qs = list(qbs)
        for qb in qs: s.add(mfma('a', L_ + qb * 4, 'a', ONES, 'v', pin + qb * 4, c))
        for db in range(8):
            qs = qs[::-1]
            for qb in qs: s.add(mfma('v', O_ + qb * 32 + db * 4, 'a', vbuf + db * 4, 'v', pin + qb * 4, c))
    def barrier(s, certify, at=0, kdelta=None):
        t = tok('b'); w = tok('w')
        s.add(I("WAIT", 'wait', rd=list(certify) + s.reads + s.gate, wr=[w], at=max(at - 1, 0)))
        s.add(I("s_barrier", 'bar', rd=[w], wr=[t], at=at))
        s.reads = []; s.gate = [t]
    def wait(s, regs, at=0):
        s.add(I("WAIT", 'wait', rd=list(regs), wr=list(regs), at=at))
    def rotate(s, kd=sDL):
        s.add(salu(f"s_add_u32 s{sWR}, s{sRD}, s{sW2K}", [f"s{sRD}"], [f"s{sWR}", 'scc']),
              salu(f"s_cmp_eq_u32 s{sRD}, 0x8000", [f"s{sRD}"], ['scc']),
              salu(f"s_cselect_b32 s{sDL}, s{sNEG}, 0x4000", ['scc'], [f"s{sDL}"]),
              salu(f"s_add_u32 s{sRD}, s{sRD}, s{sDL}", [f"s{sRD}", f"s{sDL}"], [f"s{sRD}", 'scc']))
        if kd != sDL:
            s.add(salu(f"s_add_u32 s{kd}, s{kd}, s{sDL}", [f"s{kd}", f"s{sDL}"], [f"s{kd}", 'scc']))
        s.add(valu(f"v_add_u32 v{vK}, s{kd}, v{vK}", [f"s{kd}", f"v{vK}"], [f"v{vK}"]))
        for r in (vV0, vV1):
            s.add(valu(f"v_add_u32 v{r}, s{sDL}, v{r}", [f"s{sDL}", f"v{r}"], [f"v{r}"]))
    def dma1(s, base, ldsoff, imm, vo, sr, so, fl, t, at=0):
        s.add(salu(f"s_add_u32 m0, s{base}, {ldsoff-imm}", [f"s{base}"], ['m0', 'scc'], at=max(at - 1, 0)),
              I(f"buffer_load_dwordx4 v{vo}, {rs('s',sr,4)}, s{so} offen offset:{imm} {fl} lds".replace("  ", " "), 'dma',
                rd=['m0', f"v{vo}", f"s{so}"] + srd(sr) + s.gate, wr=[t], at=at))
    def tile_dma(s, t, last=None, clamp=False, at=0, step=0):
        fl = OPT['ldkv']
        s.add(salu(f"s_add_u32 s{sVO1}, s{sVO}, 0x10000", [f"s{sVO}"], [f"s{sVO1}", 'scc']),
              salu(f"s_add_u32 s{sKO1}, s{sVO}, 0x20000", [f"s{sVO}"], [f"s{sKO1}", 'scc']))
        vo = sVO
        if clamp:
            vo = sT
            s.add(salu(f"s_max_i32 s{sT}, s{sVO}, 0", [f"s{sVO}"], [f"s{sT}", 'scc']),
                  salu(f"s_max_i32 s{sVO1}, s{sVO1}, 0", [f"s{sVO1}"], [f"s{sVO1}", 'scc']))
        if last is True:
            s.add(salu(f"s_mov_b32 s{sKO1}, s{sH0}", [f"s{sH0}"], [f"s{sKO1}"]),
                  salu(f"s_mov_b32 s{sK1+2}, s{sJ+6}", [f"s{sJ+6}"], [f"s{sK1+2}"]))
        elif last is not None:
            s.add(salu(f"s_cmp_eq_u32 s{sCNT}, {last}", [f"s{sCNT}"], ['scc']),
                  salu(f"s_cselect_b32 s{sKO1}, s{sH0}, s{sKO1}", ['scc', f"s{sH0}", f"s{sKO1}"], [f"s{sKO1}"]),
                  salu(f"s_cselect_b32 s{sK1+2}, s{sJ+6}, s{sK0+2}", ['scc', f"s{sJ+6}", f"s{sK0+2}"], [f"s{sK1+2}"]))
        n = 0
        for (lds, vreg, sr, so) in ((LK, vDK, sK0, sVO1), (LV, vDV, sV, vo), (LK + 8192, vDK, sK1, sKO1), (LV + 8192, vDV, sV, sVO1)):
            for hb in range(2):
                s.dma1(sWR, lds + hb * 1024, hb * 128, vreg, sr, so, fl, t, at=at + n * step); n += 1
        s.add(salu(f"s_add_u32 s{sVO}, s{sVO}, 0x20000", [f"s{sVO}"], [f"s{sVO}", 'scc']))
    def q_dma(s, toks, sa, sb, at=0, step=0):
        g = s.gate; s.gate = []; n = 0
        for qb in range(4):
            for rg in range(2):
                for hb in range(2):
                    s.dma1(sQL, qb * 4096 + rg * 2048 + hb * 1024, (qb & 1) * 256 + hb * 128, vDQ1 if rg else vDQ0, sQ,
                           sb if qb >= 2 else sa, OPT['ldq'], toks[qb], at=at + n * step); n += 1
        s.gate = g
    def epilogue(s, qb):
        inv = vINV + qb; t = vT + qb
        s.add(valu(f"v_accvgpr_read_b32 v{t}, a{L_+qb*4}", [f"a{L_+qb*4}"], [f"v{t}"]),
              I(f"v_rcp_f32 v{inv}, v{t}", 'trans', [f"v{t}"], [f"v{inv}"]),
              valu(f"v_subrev_u32 v{t}, s{sLO}, v{t}", [f"v{t}"], [f"v{t}"]),
              valu(f"v_cmp_le_u32 s[{sCM}:{sCM+1}], s{sRNG}, v{t}", [f"v{t}"], R('s', sCM, 2)),
              salu(f"s_or_b64 s[{sBAD}:{sBAD+1}], s[{sBAD}:{sBAD+1}], s[{sCM}:{sCM+1}]", R('s', sCM, 2) + R('s', sBAD, 2), R('s', sBAD, 2) + ['scc']))
        so = sQB if qb >= 2 else sQA
        for m in range(4):
            o = O_ + qb * 32 + m * 8
            for e in range(8): s.add(valu(f"v_mul_f32 v{o+e}, v{inv}, v{o+e}", [f"v{inv}", f"v{o+e}"], [f"v{o+e}"]))
            for e in range(4): s.add(valu(f"v_cvt_pk_bf16_f32 v{o+e}, v{o+2*e}, v{o+2*e+1}", [f"v{o+2*e}", f"v{o+2*e+1}"], [f"v{o+e}"]))
            for e in range(2): s.add(I(f"v_permlane16_swap_b32 v{o+e}, v{o+2+e}", 'perm', [f"v{o+e}", f"v{o+2+e}"], [f"v{o+e}", f"v{o+2+e}"]))
            s.add(I(f"buffer_store_dwordx4 {rs('v',o,4)}, v{vST}, {rs('s',sO,4)}, s{so} offen offset:{(qb&1)*256+m*64} {OPT['st']}".rstrip(), 'vst',
                    rd=R('v', o, 4) + [f"v{vST}", f"s{so}"] + srd(sO), wr=[]))

FULL = [(kb, qb, 'full') for kb in range(2) for qb in range(4)]
KIN = []

def ms(kind, first=False):
    b = Blk(); A = kind == 'A'
    pin = PC if first else (PA if A else PB); pout = PB if A else PA
    if first and not A:
        b.add(valu(f"v_subrev_u32 v{vK}, 0x2000, v{vK}", [f"v{vK}"], [f"v{vK}"]))
    b.vread(V0_, 0 if A else 1)
    if A: b.tile_dma('#t2', last=(0 if first else 1), at=10, step=6)
    elif first: b.tile_dma('#t2', at=8, step=3)
    sm = b.qk(K0, FULL, pout); b.add(*sm)
    if not A:
        b.rotate(); b.barrier(['#t1'], at=33)
    else: b.wait(R('a', V0_, 32), at=33)
    b.pv(V0_, range(4), pin, first)
    b.kread(K0, 1 if A else 0, at=36, step=3)
    b.wait(R('a', K0, 32), at=66)
    if A and not first:
        b.add(salu(f"s_sub_u32 s{sCNT}, s{sCNT}, 1", [f"s{sCNT}"], [f"s{sCNT}", 'scc'], at=60))
    vm_in = [['#t1']] * 8 + ([] if (A or first) else [['#t2']] * 8)
    return b.p, KIN, vm_in

def diag(tb, i):
    if 2 * i > tb: return None
    k0 = 'tri' if 2 * i == tb else 'full'
    k1 = 'zero' if 2 * i + 1 > tb else ('tri' if 2 * i + 1 == tb else 'full')
    return k0, k1

def next_params(b):
    for k in range(0, 28, 2):
        b.add(salu(f"s_mov_b64 s[{sJ+k}:{sJ+k+1}], s[{sJ+k+4}:{sJ+k+5}]", R('s', sJ + k + 4, 2), R('s', sJ + k, 2)))
    cur_params(b)
def cur_params(b):
    b.add(salu(f"s_mov_b32 s{sQA}, s{sNA}", [f"s{sNA}"], [f"s{sQA}"]),
          salu(f"s_mov_b32 s{sQB}, s{sNB}", [f"s{sNB}"], [f"s{sQB}"]),
          salu(f"s_mov_b32 s{sO+2}, s{sJ+3}", [f"s{sJ+3}"], [f"s{sO+2}"]),
          salu(f"s_and_b32 s{sCNT}, s{sJ}, 0xff", [f"s{sJ}"], [f"s{sCNT}", 'scc']),
          salu(f"s_sub_u32 s{sCNT}, s{sCNT}, 3", [f"s{sCNT}"], [f"s{sCNT}", 'scc']),
          salu(f"s_and_b32 s{sT+1}, s{sJ+4}, 0x300", [f"s{sJ+4}"], [f"s{sT+1}", 'scc']),
          salu(f"s_cselect_b32 s{sT+1}, 0x10000, 0", ['scc'], [f"s{sT+1}"]),
          salu(f"s_add_u32 s{sH0}, s{sJ+5}, s{sT+1}", [f"s{sJ+5}", f"s{sT+1}"], [f"s{sH0}", 'scc']),
          salu(f"s_max_i32 s{sH0}, s{sH0}, 0", [f"s{sH0}"], [f"s{sH0}", 'scc']))
def q_params(b, j):
    b.add(salu(f"s_and_b32 s{sT+2}, s{j}, 0xfffff000", [f"s{j}"], [f"s{sT+2}", 'scc']),
          salu(f"s_lshl_b32 s{sT+3}, s{sW}, 16", [], [f"s{sT+3}", 'scc']),
          salu(f"s_add_u32 s{sNA}, s{sT+2}, s{sT+3}", [f"s{sT+2}", f"s{sT+3}"], [f"s{sNA}", 'scc']),
          salu(f"s_sub_u32 s{sNB}, s{sT+2}, s{sT+3}", [f"s{sT+2}", f"s{sT+3}"], [f"s{sNB}", 'scc']),
          salu(f"s_add_u32 s{sNB}, s{sNB}, 0x70000", [f"s{sNB}"], [f"s{sNB}", 'scc']),
          salu(f"s_mov_b32 s{sQ+2}, s{j+3}", [f"s{j+3}"], [f"s{sQ+2}"]),
          salu(f"s_bfe_u32 s{sMODE}, s{j}, 0x20008", [f"s{j}"], [f"s{sMODE}", 'scc']),
          salu(f"s_cselect_b32 s{sKD}, 0x2000, 0", ['scc'], [f"s{sKD}"]))
def kv_switch(b, j):
    b.add(salu(f"s_mov_b32 s{sVO}, s{j+1}", [f"s{j+1}"], [f"s{sVO}"]))
    for r in (sK0, sK1, sV):
        b.add(salu(f"s_mov_b32 s{r+2}, s{j+2}", [f"s{j+2}"], [f"s{r+2}"]))
def fail_note(b):
    b.add(salu(f"s_cmp_lg_u64 s[{sBAD}:{sBAD+1}], 0", R('s', sBAD, 2), ['scc']),
          salu(f"s_cselect_b32 s{sT+4}, s{sBIT}, 0", ['scc', f"s{sBIT}"], [f"s{sT+4}"]),
          salu(f"s_or_b32 s{sFAIL}, s{sFAIL}, s{sT+4}", [f"s{sFAIL}", f"s{sT+4}"], [f"s{sFAIL}", 'scc']),
          salu(f"s_lshl_b32 s{sBIT}, s{sBIT}, 1", [f"s{sBIT}"], [f"s{sBIT}", 'scc']),
          salu(f"s_mov_b64 s[{sBAD}:{sBAD+1}], 0", [], R('s', sBAD, 2)))

def tail(w, merged):
    b = Blk(); tbs = {0: w, 1: w, 2: 7 - w, 3: 7 - w}
    act = lambda i: [qb for qb in range(4) if diag(tbs[qb], i)]
    def blocks(i):
        return [(kb, qb, diag(tbs[qb], i)[kb]) for kb in range(2) for qb in act(i)]
    def kbs(i): return [kb for kb in range(2) if any(k == kb and kind != 'zero' for k, _, kind in blocks(i))]
    qt = [tok('q') for _ in range(4)]
    kb_ = [K0, K1]; vb_ = [V0_, V1_]; pb_ = [PA, PB]
    lastqk = {qb: max(i for i in range(4) if qb in act(i)) for qb in range(4)}
    def after_qk(i):
        if merged:
            for qb in range(4):
                if lastqk[qb] == i: b.qread(qb, [qt[qb]])
    def after_pv(i):
        for qb in range(4):
            if lastqk[qb] == i: b.epilogue(qb)
    b.vread(V0_, 1)
    if merged:
        q_params(b, sJ + 4); b.q_dma(qt, sNA, sNB, at=8, step=2)
    b.add(*b.qk(K0, blocks(0), PA))
    b.rotate(); b.barrier(['#t1'])
    b.kread(K1, 0, kbs(1)); b.vread(V1_, 0)
    b.pv(V0_, range(4), PB)
    if merged:
        kv_switch(b, sJ + 4); b.tile_dma('#n0', clamp=True)
    b.add(*b.qk(K1, blocks(1), PB))
    b.kread(K0, 1, kbs(2)); b.vread(V0_, 1)
    b.pv(V1_, act(0), PA); after_qk(0); after_pv(0)
    b.add(*b.qk(K0, blocks(2), PA))
    b.rotate(); b.barrier(['#t2'])
    if act(3): b.kread(K1, 0, kbs(3))
    b.vread(V1_, 0)
    b.pv(V0_, act(1), PB); after_qk(1); after_pv(1)
    if merged: b.tile_dma('#n1')
    if act(3): b.add(*b.qk(K1, blocks(3), PB))
    if merged: b.kread(K0, 1)
    if act(3): b.vread(V0_, 1)
    after_qk(2); after_qk(3)
    nA = [(kb, qb, 'full') for kb in range(2) for qb in (0, 1)]
    nB = [(kb, qb, 'full') for kb in range(2) for qb in (2, 3)]
    if not act(3) and merged: b.add(*b.qk(K0, nA, PC))
    b.pv(V1_, act(2), PA); after_pv(2)
    if act(3):
        if merged: b.add(*b.qk(K0, nA, PC))
        b.pv(V0_, act(3), PB); after_pv(3)
    fail_note(b)
    if merged:
        b.add(*b.qk(K0, nB, PC))
        b.rotate(kd=sKD); b.barrier(['#n0'])
        b.kread(K0, 0)
        next_params(b)
        b.wait(R('a', K0, 32))
    return b.p, KIN, [['#t1']] * 8 + [['#t2']] * 8

def init_block():
    b = Blk()
    b.add(valu(f"v_subrev_u32 v{vK}, 0x2000, v{vK}", [f"v{vK}"], [f"v{vK}"]))
    b.tile_dma('#t2', last=True)
    b.add(salu(f"s_cmp_eq_u32 s{sMODE}, 2", [f"s{sMODE}"], ['scc']),
          salu(f"s_cselect_b32 s{sT+5}, -1, 0", ['scc'], [f"s{sT+5}"]))
    for e in range(16): b.add(valu(f"v_and_b32 v{PB+e}, s{sT+5}, v{PC+e}", [f"s{sT+5}", f"v{PC+e}"], [f"v{PB+e}"]))
    for e in range(0, 128, 2): b.add(valu(f"v_mov_b64 v[{O_+e}:{O_+e+1}], 0", [], R('v', O_ + e, 2)))
    for e in range(16): b.add(valu(f"v_accvgpr_write_b32 a{L_+e}, 0", [], [f"a{L_+e}"]))
    return b.p, KIN, [['#t1']] * 8

def f32(x): return struct.unpack('<I', struct.pack('<f', x))[0]

def prologue():
    t = f"""
    s_cmp_ge_u32 s2, 256
    s_cbranch_scc1 L_end
{"    s_mov_b32 s100, 0" + chr(10) + text(stamp()) if OPT['stamp'] else ""}    s_getpc_b64 s[4:5]
L_pc:
    s_lshr_b32 s3, s2, 3
    s_lshl_b32 s3, s3, 7
    s_add_u32 s4, s4, s3
    s_addc_u32 s5, s5, 0
    s_add_u32 s4, s4, L_table-L_pc
    s_addc_u32 s5, s5, 0
    s_load_dwordx4 s[{sT}:{sT+3}], s[0:1], 0
    s_load_dwordx2 s[{sT+4}:{sT+5}], s[0:1], 16
    s_load_dwordx2 s[{sT+6}:{sT+7}], s[0:1], 32
    s_load_dwordx16 s[{sJ}:{sJ+15}], s[4:5], 0
    s_load_dwordx16 s[{sJ+16}:{sJ+31}], s[4:5], 64
    v_lshrrev_b32 v1, 6, v0
    v_and_b32 v0, 63, v0
    v_readfirstlane_b32 s{sW}, v1
    v_and_b32 v2, 3, v0                 ; pos / c8
    v_bfe_u32 v3, v0, 2, 3
    v_lshrrev_b32 v4, 5, v0             ; s2
    v_lshlrev_b32 v4, 6, v4
    s_lshl_b32 s{sW2K}, s{sW}, 11
    s_lshl_b32 s6, s{sW}, 14            ; w*8 rows*2048
    s_and_b32 s7, s{sW}, 1
    s_lshl_b32 s7, s7, 1
    v_lshl_add_u32 v5, v3, 11, v4
    v_add_u32 v5, s6, v5
    v_xor_b32 v6, s7, v2
    v_lshl_add_u32 v{vDK}, v6, 4, v5
    v_lshrrev_b32 v6, 2, v3
    v_lshlrev_b32 v6, 1, v6
    v_xor_b32 v6, v6, v2
    v_lshl_add_u32 v{vDV}, v6, 4, v5
    v_lshl_add_u32 v5, v3, 12, v4
    v_lshl_add_u32 v{vDQ0}, v2, 4, v5
    v_xor_b32 v6, 2, v2
    v_lshl_add_u32 v{vDQ1}, v6, 4, v5
    v_add_u32 v{vDQ1}, 0x8000, v{vDQ1}
    s_add_u32 s{sQL}, s6, {LQ}
    s_and_b32 s3, s2, 7
    s_lshl_b32 s7, s3, 9
    s_lshl_b32 s3, s3, 8
    s_mov_b32 s{sQ+3}, 0x20000
    s_mov_b32 s{sK0+3}, 0x20000
    s_mov_b32 s{sK1+3}, 0x20000
    s_mov_b32 s{sV+3}, 0x20000
    s_mov_b32 s{sO+3}, 0x20000
    s_mov_b32 s{sNEG}, 0xffff8000
    s_mov_b32 s{sRD}, 0x8000
    s_waitcnt lgkmcnt(0)
    s_add_u32 s{sQ}, s{sT}, s7
    s_addc_u32 s{sQ+1}, s{sT+1}, 0
    s_add_u32 s{sK0}, s{sT+2}, s3
    s_addc_u32 s{sK0+1}, s{sT+3}, 0
    s_mov_b32 s{sK1}, s{sK0}
    s_mov_b32 s{sK1+1}, s{sK0+1}
    s_add_u32 s{sV}, s{sT+4}, s3
    s_addc_u32 s{sV+1}, s{sT+5}, 0
    s_add_u32 s{sO}, s{sT+6}, s7
    s_addc_u32 s{sO+1}, s{sT+7}, 0
"""
    b = Blk()
    q_params(b, sJ); kv_switch(b, sJ)
    b.add(salu(f"s_lshl_b32 s{sT+1}, s{sKD}, 3", [f"s{sKD}"], [f"s{sT+1}", 'scc']),
          salu(f"s_add_u32 s{sT+1}, s{sT+1}, s{sVO}", [f"s{sT+1}", f"s{sVO}"], [f"s{sT+1}", 'scc']),
          salu(f"s_max_i32 s{sT+1}, s{sT+1}, 0", [f"s{sT+1}"], [f"s{sT+1}", 'scc']))
    for hb in range(2): b.dma1(sW2K, LK + 0x8000 + 8192 + hb * 1024, hb * 128, vDK, sK0, sT + 1, OPT['ldkv'], '#h0')
    qt = [tok('q') for _ in range(4)]
    b.q_dma(qt, sNA, sNB)
    b.add(salu(f"s_mov_b32 s{sWR}, s{sW2K}", [], [f"s{sWR}"]))
    b.tile_dma('#n0', clamp=True)
    b.add(salu(f"s_add_u32 s{sWR}, s{sW2K}, 0x4000", [], [f"s{sWR}", 'scc']))
    b.tile_dma('#n1')
    cur_params(b)
    seq1, _, vm = legalize(b.p, hoist=False)
    t2 = f"""
    s_mov_b32 s{sC}, {hex(f32(math.log2(math.e) / math.sqrt(128)))}
    s_mov_b32 s{sLO}, {hex(f32(2.0**-40))}
    s_mov_b32 s{sRNG}, {hex(f32(2.0**40) - f32(2.0**-40))}
    s_mov_b32 s{sFAIL}, 0
    s_mov_b32 s{sBIT}, 1
    s_mov_b64 s[{sBAD}:{sBAD+1}], 0
    v_lshrrev_b32 v3, 4, v0             ; g
    v_bfe_u32 v4, v0, 3, 1              ; (l%16)/8
    v_and_b32 v5, 7, v0
    v_lshlrev_b32 v6, 1, v4
    v_xor_b32 v6, v6, v3
    v_lshlrev_b32 v6, 4, v6
    v_lshl_add_u32 v6, v5, 6, v6
    v_lshl_add_u32 v6, v4, 11, v6       ; laneK
    v_add_u32 v{vK}, {LK+0x8000}, v6
    v_add_u32 v{vQ}, s{sQL}, v6
    v_lshrrev_b32 v4, 5, v0             ; g/2
    v_bfe_u32 v5, v0, 2, 3              ; 4*(g%2)+r
    v_and_b32 v6, 1, v3                 ; g%2
    v_lshlrev_b32 v7, 3, v2
    v_lshl_add_u32 v7, v5, 6, v7
    v_lshl_add_u32 v7, v4, 11, v7
    v_add_u32 v7, {LV+0x8000}, v7
    v_lshl_add_u32 v{vV0}, v6, 5, v7
    v_xor_b32 v{vV1}, 32, v{vV0}
    v_and_b32 v5, 15, v0                ; q
    v_lshlrev_b32 v7, 4, v4
    v_lshl_add_u32 v7, v6, 5, v7
    v_lshl_add_u32 v{vST}, v5, 12, v7
    v_lshlrev_b32 v3, 2, v3
    v_sub_u32 v5, v5, v3                ; q - 4g
    v_mov_b32 v7, 0xff800000
    v_mov_b32 v6, 0x3f803f80
"""
    for r in range(4):
        t2 += f"    v_cmp_gt_i32 vcc, {r}, v5\n    v_accvgpr_write_b32 a{ONES+r}, v6\n    s_nop 0\n    v_cndmask_b32 v{TRI+r}, 0, v7, vcc\n"
    b = Blk()
    b.barrier(['#h0'])
    b.kread(K0, 1)
    for qb in range(4):
        b.qread(qb, [qt[qb]])
    b.add(*b.qk(K0, [(kb, qb, 'full') for qb in range(4) for kb in range(2)], PC))
    b.rotate(kd=sKD); b.barrier(['#n0'], at=32)
    b.kread(K0, 0)
    b.wait(R('a', K0, 32))
    seq2, lg, vm2 = legalize(schedule(b.p), vm_in=vm)
    return t + text(seq1) + t2, seq2

def build(p, lg, vm, name, sched=True):
    seq = schedule(p) if sched else p
    seq, lo, vo = legalize(seq, lg, vm)
    nm = sum(i.cls == 'mfma' for i in seq); nn = sum(states(i) for i in seq if i.cls == 'nop')
    print(f"; {name}: {len(seq)} instrs, {nm} mfma, est {estimate(seq)} cyc (ideal {ideal(seq)}), nops {nn}, waits {sum(i.cls=='wait' for i in seq)}, lgkm_out {len(lo)} vm_out {len(vo)}", file=sys.stderr)
    return seq

def stamp():
    if not OPT['stamp']: return []
    t = ["s_memrealtime s[96:97]", "s_memtime s[98:99]", "s_waitcnt lgkmcnt(0)", "s_mov_b32 m0, s100", "s_nop 0",
         "v_writelane_b32 v240, s96, m0", "v_writelane_b32 v241, s98, m0", "s_add_u32 s100, s100, 1"]
    return [I(x, 'salu') for x in t]
def br(txt): return I(txt, 'br')
def lab(n): return I(n, 'label')

def dispatch_mode():
    return [salu(f"s_cmp_eq_u32 s{sMODE}, 0", [f"s{sMODE}"], ['scc']), br("s_cbranch_scc1 L_Fe"),
            salu(f"s_cmp_eq_u32 s{sMODE}, 1", [f"s{sMODE}"], ['scc']), br("s_cbranch_scc1 L_Fo"), br("s_branch L_init")]

def kernel(slots):
    pre, p0 = prologue()
    B = {}
    B['P0'] = stamp() + p0 + stamp() + dispatch_mode()
    B['Fe'] = build(*ms('A', True), 'Fe') + [salu(f"s_cmp_eq_u32 s{sCNT}, 0", [], ['scc']), br("s_cbranch_scc1 L_tail")]
    B['B'] = build(*ms('B'), 'msB')
    B['A'] = build(*ms('A'), 'msA') + [salu(f"s_cmp_lg_u32 s{sCNT}, 0", [], ['scc']), br("s_cbranch_scc1 L_B")]
    B['tail'] = stamp() + [salu(f"s_cmp_eq_u32 s{sJ+4}, 0", [], ['scc']), br("s_cbranch_scc1 L_fin")]
    for w in (1, 2, 3): B['tail'] += [salu(f"s_cmp_eq_u32 s{sW}, {w}", [], ['scc']), br(f"s_cbranch_scc1 L_T{w}")]
    for w in range(4): B[f'T{w}'] = build(*tail(w, True), f'T{w}') + stamp() + dispatch_mode()
    B['Fo'] = build(*ms('B', True), 'Fo') + [br("s_branch L_A")]
    B['init'] = build(*init_block(), 'init', sched=False) + [br("s_branch L_tail")]
    B['fin'] = []
    for w in (1, 2, 3): B['fin'] += [salu(f"s_cmp_eq_u32 s{sW}, {w}", [], ['scc']), br(f"s_cbranch_scc1 L_U{w}")]
    for w in range(4): B[f'U{w}'] = build(*tail(w, False), f'U{w}') + [br("s_branch L_done")]
    ent = ['P0'] + [f'T{w}' for w in range(4)]
    edges = [(a, x) for a in ent for x in ('Fe', 'Fo', 'init')] + [('Fe', 'B'), ('B', 'A'), ('A', 'B'), ('Fo', 'A')]
    edges += [(a, f'{x}{w}') for a in ('Fe', 'A', 'init') for x in 'TU' for w in range(4)]
    for a, x in edges:
        pa = [i for i in B[a] if i.cls not in ('br',)][-16:]
        bad = check_hazards(pa + B[x][:16], start=len(pa))
        assert not bad, (a, x, bad)
    order = ['P0', 'Fe', 'B', 'A', 'tail', 'T0', 'T1', 'T2', 'T3', 'Fo', 'init', 'fin', 'U0', 'U1', 'U2', 'U3']
    s = f"""; varlen causal GQA flash attention, generated by gen/gen.py (hand-written generator)
; @launch grid=(256,1,1) block=(256,1,1) lds=163840
.amdgcn_target "amdgcn-amd-amdhsa--gfx950"
.text
.globl {NAME}
.p2align 8
.type {NAME},@function
{NAME}:
""" + pre
    for k in order:
        s += f"L_{k}:\n" + text(B[k])
    s += "L_done:\n"
    if OPT['stamp']:
        s += text(stamp()) + "    s_waitcnt vmcnt(0)\n" + text(stamp())
        s += f"""    s_load_dwordx2 s[4:5], s[0:1], 48
    s_waitcnt lgkmcnt(0)
    s_mov_b32 s6, 0x100000
    s_mov_b32 s7, 0x20000
    v_mbcnt_lo_u32_b32 v0, -1, 0
    v_mbcnt_hi_u32_b32 v0, -1, v0
    v_lshlrev_b32 v0, 3, v0
    s_lshl_b32 s3, s2, 2
    s_add_u32 s3, s3, s{sW}
    s_lshl_b32 s3, s3, 9
    s_getreg_b32 s96, hwreg(HW_REG_XCC_ID)
    s_getreg_b32 s97, hwreg(HW_REG_HW_ID)
    v_writelane_b32 v240, s96, 63
    v_writelane_b32 v241, s97, 63
    v_writelane_b32 v240, s100, 62
    buffer_store_dwordx2 v[240:241], v0, s[4:7], s3 offen
"""
    s += "L_end:\n    s_endpgm\n.p2align 7\nL_table:\n"
    for sl in slots:
        assert len(sl) <= 7
        w = sum((J.enc(j) for j in sl), []); w += [0] * (32 - len(w))
        s += "    .long " + ", ".join(hex(x) for x in w) + "\n"
    s += f""".section .rodata,"a"
.p2align 6
.amdhsa_kernel {NAME}
  .amdhsa_next_free_vgpr 512
  .amdhsa_next_free_sgpr 102
  .amdhsa_accum_offset 256
  .amdhsa_group_segment_fixed_size 0
  .amdhsa_kernarg_size 56
  .amdhsa_user_sgpr_count 2
  .amdhsa_user_sgpr_kernarg_segment_ptr 1
  .amdhsa_system_sgpr_workgroup_id_x 1
.end_amdhsa_kernel
"""
    return s

if __name__ == "__main__":
    out = sys.argv[1] if len(sys.argv) > 1 else "standalone__ragged_sequences_varlen_flash_attn__ragged.s"
    for a in sys.argv[2:]:
        k, v = a.split('='); OPT[k] = v
    slots, _ = J.pack(J.make_jobs())
    if OPT.get('dup'): slots = [s + s for s in slots]
    open(out, "w").write(kernel(slots))
```

```python
import sys, struct, math
from ir import *
import jobs as J

NAME = "standalone__ragged_sequences_varlen_flash_attn__ragged_kernel"
OPT = dict(ldq="nt", ldkv="", st="", stamp=False)

O_, S_, PA, PB, PC, TRI = 0, 128, 160, 176, 192, 208
vK, vV0, vV1, vDK, vDV, vDQ0, vDQ1, vQ, vST = 212, 213, 214, 215, 216, 217, 218, 219, 220
vINV, vT = 224, 228
Q_, K0, V0_, L_, ONES, K1, V1_ = 0, 64, 96, 128, 144, 148, 180
sQ, sK0, sK1, sV, sO = 8, 12, 16, 20, 24
sC, sW, sCNT, sWR, sDL, sRD, sVO, sVO1, sKO1, sW2K = 28, 29, 30, 31, 32, 33, 34, 35, 36, 37
sQA, sQB = 38, 39
sJ = 40
sH0, sFAIL, sBIT, sNEG, sLO, sRNG, sQL, sMODE, sNA, sNB, sKD = 72, 73, 74, 75, 76, 77, 78, 79, 80, 81, 82
sBAD, sCM, sT = 84, 86, 88
LK, LV, LQ = 0, 49152, 98304

uid = [0]
def tok(p):
    uid[0] += 1; return f"#{p}{uid[0]}"

def srd(b): return R('s', b, 4)

class Blk:
    def __init__(s): s.p = []; s.reads = []; s.gate = []
    def add(s, *i): s.p.extend(i)
    def kread(s, kbuf, half, kbs=(0, 1), at=0, step=1):
        n = 0
        for kb in kbs:
            for st in range(4):
                t = tok('r'); s.reads.append(t); d = kbuf + kb * 16 + st * 4
                s.add(I(f"ds_read_b128 {rs('a',d,4)}, v{vK} offset:{half*8192+kb*4096+st*512}", 'ds',
                        rd=[f"v{vK}"] + s.gate, wr=R('a', d, 4) + [t], at=at + n * step)); n += 1
    def vread(s, vbuf, half, at=0):
        for db in range(8):
            for u in range(2):
                t = tok('r'); s.reads.append(t); d = vbuf + db * 4 + u * 2; va = vV1 if db & 1 else vV0
                s.add(I(f"ds_read_b64_tr_b16 {rs('a',d,2)}, v{va} offset:{half*8192+u*4096+(db//2)*512}", 'ds',
                        rd=[f"v{va}"] + s.gate, wr=R('a', d, 2) + [t], at=at))
    def qread(s, qb, dep):
        for st in range(4):
            d = Q_ + qb * 16 + st * 4
            s.add(I(f"ds_read_b128 {rs('a',d,4)}, v{vQ} offset:{qb*4096+st*512}", 'ds',
                    rd=[f"v{vQ}"] + dep, wr=R('a', d, 4)))
    def qk(s, kbuf, blocks, pout):
        flip = False; sm = []
        for kb, qb, kind in blocks:
            p = pout + qb * 4 + kb * 2; d = S_ + kb * 16 + qb * 4
            if kind == 'zero':
                for e in range(2): sm.append(valu(f"v_mov_b32 v{p+e}, 0", [], [f"v{p+e}"]))
                continue
            order = [3, 2, 1, 0] if flip else [0, 1, 2, 3]; flip = not flip
            for n, st in enumerate(order):
                c = None if n else ('z' if kind == 'full' else TRI)
                s.add(mfma('v', d, 'a', kbuf + kb * 16 + st * 4, 'a', Q_ + qb * 16 + st * 4, c))
            for e in range(2):
                a, b = d + 2 * e, d + 2 * e + 1
                sm += [valu(f"v_mul_f32 v{a}, s{sC}, v{a}", [f"v{a}"], [f"v{a}"]),
                       valu(f"v_mul_f32 v{b}, s{sC}, v{b}", [f"v{b}"], [f"v{b}"]),
                       I(f"v_exp_f32 v{a}, v{a}", 'trans', [f"v{a}"], [f"v{a}"]),
                       I(f"v_exp_f32 v{b}, v{b}", 'trans', [f"v{b}"], [f"v{b}"]),
                       valu(f"v_cvt_pk_bf16_f32 v{p+e}, v{a}, v{b}", [f"v{a}", f"v{b}"], [f"v{p+e}"])]
        return sm
    def pv(s, vbuf, qbs, pin, first=False):
        c = 'z' if first else None
        qs = list(qbs)
        for qb in qs: s.add(mfma('a', L_ + qb * 4, 'a', ONES, 'v', pin + qb * 4, c))
        for db in range(8):
            qs = qs[::-1]
            for qb in qs: s.add(mfma('v', O_ + qb * 32 + db * 4, 'a', vbuf + db * 4, 'v', pin + qb * 4, c))
    def barrier(s, certify, at=0, kdelta=None):
        t = tok('b'); w = tok('w')
        s.add(I("WAIT", 'wait', rd=list(certify) + s.reads + s.gate, wr=[w], at=max(at - 1, 0)))
        s.add(I("s_barrier", 'bar', rd=[w], wr=[t], at=at))
        s.reads = []; s.gate = [t]
    def wait(s, regs, at=0):
        s.add(I("WAIT", 'wait', rd=list(regs), wr=list(regs), at=at))
    def rotate(s, kd=sDL):
        s.add(salu(f"s_add_u32 s{sWR}, s{sRD}, s{sW2K}", [f"s{sRD}"], [f"s{sWR}", 'scc']),
              salu(f"s_cmp_eq_u32 s{sRD}, 0x8000", [f"s{sRD}"], ['scc']),
              salu(f"s_cselect_b32 s{sDL}, s{sNEG}, 0x4000", ['scc'], [f"s{sDL}"]),
              salu(f"s_add_u32 s{sRD}, s{sRD}, s{sDL}", [f"s{sRD}", f"s{sDL}"], [f"s{sRD}", 'scc']))
        if kd != sDL:
            s.add(salu(f"s_add_u32 s{kd}, s{kd}, s{sDL}", [f"s{kd}", f"s{sDL}"], [f"s{kd}", 'scc']))
        s.add(valu(f"v_add_u32 v{vK}, s{kd}, v{vK}", [f"s{kd}", f"v{vK}"], [f"v{vK}"]))
        for r in (vV0, vV1):
            s.add(valu(f"v_add_u32 v{r}, s{sDL}, v{r}", [f"s{sDL}", f"v{r}"], [f"v{r}"]))
    def dma1(s, base, ldsoff, imm, vo, sr, so, fl, t, at=0):
        s.add(salu(f"s_add_u32 m0, s{base}, {ldsoff-imm}", [f"s{base}"], ['m0', 'scc'], at=max(at - 1, 0)),
              I(f"buffer_load_dwordx4 v{vo}, {rs('s',sr,4)}, s{so} offen offset:{imm} {fl} lds".replace("  ", " "), 'dma',
                rd=['m0', f"v{vo}", f"s{so}"] + srd(sr) + s.gate, wr=[t], at=at))
    def tile_dma(s, t, last=None, clamp=False, at=0, step=0):
        fl = OPT['ldkv']
        s.add(salu(f"s_add_u32 s{sVO1}, s{sVO}, 0x10000", [f"s{sVO}"], [f"s{sVO1}", 'scc']),
              salu(f"s_add_u32 s{sKO1}, s{sVO}, 0x20000", [f"s{sVO}"], [f"s{sKO1}", 'scc']))
        vo = sVO
        if clamp:
            vo = sT
            s.add(salu(f"s_max_i32 s{sT}, s{sVO}, 0", [f"s{sVO}"], [f"s{sT}", 'scc']),
                  salu(f"s_max_i32 s{sVO1}, s{sVO1}, 0", [f"s{sVO1}"], [f"s{sVO1}", 'scc']))
        if last is True:
            s.add(salu(f"s_mov_b32 s{sKO1}, s{sH0}", [f"s{sH0}"], [f"s{sKO1}"]),
                  salu(f"s_mov_b32 s{sK1+2}, s{sJ+6}", [f"s{sJ+6}"], [f"s{sK1+2}"]))
        elif last is not None:
            s.add(salu(f"s_cmp_eq_u32 s{sCNT}, {last}", [f"s{sCNT}"], ['scc']),
                  salu(f"s_cselect_b32 s{sKO1}, s{sH0}, s{sKO1}", ['scc', f"s{sH0}", f"s{sKO1}"], [f"s{sKO1}"]),
                  salu(f"s_cselect_b32 s{sK1+2}, s{sJ+6}, s{sK0+2}", ['scc', f"s{sJ+6}", f"s{sK0+2}"], [f"s{sK1+2}"]))
        n = 0
        for (lds, vreg, sr, so) in ((LK, vDK, sK0, sVO1), (LV, vDV, sV, vo), (LK + 8192, vDK, sK1, sKO1), (LV + 8192, vDV, sV, sVO1)):
            for hb in range(2):
                s.dma1(sWR, lds + hb * 1024, hb * 128, vreg, sr, so, fl, t, at=at + n * step); n += 1
        s.add(salu(f"s_add_u32 s{sVO}, s{sVO}, 0x20000", [f"s{sVO}"], [f"s{sVO}", 'scc']))
    def q_dma(s, toks, sa, sb, at=0, step=0):
        g = s.gate; s.gate = []; n = 0
        for qb in range(4):
            for rg in range(2):
                for hb in range(2):
                    s.dma1(sQL, qb * 4096 + rg * 2048 + hb * 1024, (qb & 1) * 256 + hb * 128, vDQ1 if rg else vDQ0, sQ,
                           sb if qb >= 2 else sa, OPT['ldq'], toks[qb], at=at + n * step); n += 1
        s.gate = g
    def epilogue(s, qb):
        inv = vINV + qb; t = vT + qb
        s.add(valu(f"v_accvgpr_read_b32 v{t}, a{L_+qb*4}", [f"a{L_+qb*4}"], [f"v{t}"]),
              I(f"v_rcp_f32 v{inv}, v{t}", 'trans', [f"v{t}"], [f"v{inv}"]),
              valu(f"v_subrev_u32 v{t}, s{sLO}, v{t}", [f"v{t}"], [f"v{t}"]),
              valu(f"v_cmp_le_u32 s[{sCM}:{sCM+1}], s{sRNG}, v{t}", [f"v{t}"], R('s', sCM, 2)),
              salu(f"s_or_b64 s[{sBAD}:{sBAD+1}], s[{sBAD}:{sBAD+1}], s[{sCM}:{sCM+1}]", R('s', sCM, 2) + R('s', sBAD, 2), R('s', sBAD, 2) + ['scc']))
        so = sQB if qb >= 2 else sQA
        for m in range(4):
            o = O_ + qb * 32 + m * 8
            for e in range(8): s.add(valu(f"v_mul_f32 v{o+e}, v{inv}, v{o+e}", [f"v{inv}", f"v{o+e}"], [f"v{o+e}"]))
            for e in range(4): s.add(valu(f"v_cvt_pk_bf16_f32 v{o+e}, v{o+2*e}, v{o+2*e+1}", [f"v{o+2*e}", f"v{o+2*e+1}"], [f"v{o+e}"]))
            for e in range(2): s.add(I(f"v_permlane16_swap_b32 v{o+e}, v{o+2+e}", 'perm', [f"v{o+e}", f"v{o+2+e}"], [f"v{o+e}", f"v{o+2+e}"]))
            s.add(I(f"buffer_store_dwordx4 {rs('v',o,4)}, v{vST}, {rs('s',sO,4)}, s{so} offen offset:{(qb&1)*256+m*64} {OPT['st']}".rstrip(), 'vst',
                    rd=R('v', o, 4) + [f"v{vST}", f"s{so}"] + srd(sO), wr=[]))

FULL = [(kb, qb, 'full') for kb in range(2) for qb in range(4)]
KIN = []

def ms(kind, first=False):
    b = Blk(); A = kind == 'A'
    pin = PC if first else (PA if A else PB); pout = PB if A else PA
    if first and not A:
        b.add(valu(f"v_subrev_u32 v{vK}, 0x2000, v{vK}", [f"v{vK}"], [f"v{vK}"]))
    b.vread(V0_, 0 if A else 1)
    if A: b.tile_dma('#t2', last=(0 if first else 1), at=10, step=6)
    elif first: b.tile_dma('#t2', at=8, step=3)
    sm = b.qk(K0, FULL, pout); b.add(*sm)
    if not A:
        b.rotate(); b.barrier(['#t1'], at=33)
    else: b.wait(R('a', V0_, 32), at=33)
    b.pv(V0_, range(4), pin, first)
    b.kread(K0, 1 if A else 0, at=36, step=3)
    b.wait(R('a', K0, 32), at=66)
    if A and not first:
        b.add(salu(f"s_sub_u32 s{sCNT}, s{sCNT}, 1", [f"s{sCNT}"], [f"s{sCNT}", 'scc'], at=60))
    vm_in = [['#t1']] * 8 + ([] if (A or first) else [['#t2']] * 8)
    return b.p, KIN, vm_in

def diag(tb, i):
    if 2 * i > tb: return None
    k0 = 'tri' if 2 * i == tb else 'full'
    k1 = 'zero' if 2 * i + 1 > tb else ('tri' if 2 * i + 1 == tb else 'full')
    return k0, k1

def next_params(b):
    for k in range(0, 28, 2):
        b.add(salu(f"s_mov_b64 s[{sJ+k}:{sJ+k+1}], s[{sJ+k+4}:{sJ+k+5}]", R('s', sJ + k + 4, 2), R('s', sJ + k, 2)))
    cur_params(b)
def cur_params(b):
    b.add(salu(f"s_mov_b32 s{sQA}, s{sNA}", [f"s{sNA}"], [f"s{sQA}"]),
          salu(f"s_mov_b32 s{sQB}, s{sNB}", [f"s{sNB}"], [f"s{sQB}"]),
          salu(f"s_mov_b32 s{sO+2}, s{sJ+3}", [f"s{sJ+3}"], [f"s{sO+2}"]),
          salu(f"s_and_b32 s{sCNT}, s{sJ}, 0xff", [f"s{sJ}"], [f"s{sCNT}", 'scc']),
          salu(f"s_sub_u32 s{sCNT}, s{sCNT}, 3", [f"s{sCNT}"], [f"s{sCNT}", 'scc']),
          salu(f"s_and_b32 s{sT+1}, s{sJ+4}, 0x300", [f"s{sJ+4}"], [f"s{sT+1}", 'scc']),
          salu(f"s_cselect_b32 s{sT+1}, 0x10000, 0", ['scc'], [f"s{sT+1}"]),
          salu(f"s_add_u32 s{sH0}, s{sJ+5}, s{sT+1}", [f"s{sJ+5}", f"s{sT+1}"], [f"s{sH0}", 'scc']),
          salu(f"s_max_i32 s{sH0}, s{sH0}, 0", [f"s{sH0}"], [f"s{sH0}", 'scc']))
def q_params(b, j):
    b.add(salu(f"s_and_b32 s{sT+2}, s{j}, 0xfffff000", [f"s{j}"], [f"s{sT+2}", 'scc']),
          salu(f"s_lshl_b32 s{sT+3}, s{sW}, 16", [], [f"s{sT+3}", 'scc']),
          salu(f"s_add_u32 s{sNA}, s{sT+2}, s{sT+3}", [f"s{sT+2}", f"s{sT+3}"], [f"s{sNA}", 'scc']),
          salu(f"s_sub_u32 s{sNB}, s{sT+2}, s{sT+3}", [f"s{sT+2}", f"s{sT+3}"], [f"s{sNB}", 'scc']),
          salu(f"s_add_u32 s{sNB}, s{sNB}, 0x70000", [f"s{sNB}"], [f"s{sNB}", 'scc']),
          salu(f"s_mov_b32 s{sQ+2}, s{j+3}", [f"s{j+3}"], [f"s{sQ+2}"]),
          salu(f"s_bfe_u32 s{sMODE}, s{j}, 0x20008", [f"s{j}"], [f"s{sMODE}", 'scc']),
          salu(f"s_cselect_b32 s{sKD}, 0x2000, 0", ['scc'], [f"s{sKD}"]))
def kv_switch(b, j):
    b.add(salu(f"s_mov_b32 s{sVO}, s{j+1}", [f"s{j+1}"], [f"s{sVO}"]))
    for r in (sK0, sK1, sV):
        b.add(salu(f"s_mov_b32 s{r+2}, s{j+2}", [f"s{j+2}"], [f"s{r+2}"]))
def fail_note(b):
    b.add(salu(f"s_cmp_lg_u64 s[{sBAD}:{sBAD+1}], 0", R('s', sBAD, 2), ['scc']),
          salu(f"s_cselect_b32 s{sT+4}, s{sBIT}, 0", ['scc', f"s{sBIT}"], [f"s{sT+4}"]),
          salu(f"s_or_b32 s{sFAIL}, s{sFAIL}, s{sT+4}", [f"s{sFAIL}", f"s{sT+4}"], [f"s{sFAIL}", 'scc']),
          salu(f"s_lshl_b32 s{sBIT}, s{sBIT}, 1", [f"s{sBIT}"], [f"s{sBIT}", 'scc']),
          salu(f"s_mov_b64 s[{sBAD}:{sBAD+1}], 0", [], R('s', sBAD, 2)))

def tail(w, merged):
    b = Blk(); tbs = {0: w, 1: w, 2: 7 - w, 3: 7 - w}
    act = lambda i: [qb for qb in range(4) if diag(tbs[qb], i)]
    def blocks(i):
        return [(kb, qb, diag(tbs[qb], i)[kb]) for kb in range(2) for qb in act(i)]
    def kbs(i): return [kb for kb in range(2) if any(k == kb and kind != 'zero' for k, _, kind in blocks(i))]
    qt = [tok('q') for _ in range(4)]
    kb_ = [K0, K1]; vb_ = [V0_, V1_]; pb_ = [PA, PB]
    lastqk = {qb: max(i for i in range(4) if qb in act(i)) for qb in range(4)}
    def after_qk(i):
        if merged:
            for qb in range(4):
                if lastqk[qb] == i: b.qread(qb, [qt[qb]])
    def after_pv(i):
        for qb in range(4):
            if lastqk[qb] == i: b.epilogue(qb)
    b.vread(V0_, 1)
    if merged:
        q_params(b, sJ + 4); b.q_dma(qt, sNA, sNB, at=8, step=2)
    b.add(*b.qk(K0, blocks(0), PA))
    b.rotate(); b.barrier(['#t1'])
    b.kread(K1, 0, kbs(1)); b.vread(V1_, 0)
    b.pv(V0_, range(4), PB)
    if merged:
        kv_switch(b, sJ + 4); b.tile_dma('#n0', clamp=True)
    b.add(*b.qk(K1, blocks(1), PB))
    b.kread(K0, 1, kbs(2)); b.vread(V0_, 1)
    b.pv(V1_, act(0), PA); after_qk(0); after_pv(0)
    b.add(*b.qk(K0, blocks(2), PA))
    b.rotate(); b.barrier(['#t2'])
    if act(3): b.kread(K1, 0, kbs(3))
    b.vread(V1_, 0)
    b.pv(V0_, act(1), PB); after_qk(1); after_pv(1)
    if merged: b.tile_dma('#n1')
    if act(3): b.add(*b.qk(K1, blocks(3), PB))
    if merged: b.kread(K0, 1)
    if act(3): b.vread(V0_, 1)
    after_qk(2); after_qk(3)
    nA = [(kb, qb, 'full') for kb in range(2) for qb in (0, 1)]
    nB = [(kb, qb, 'full') for kb in range(2) for qb in (2, 3)]
    if not act(3) and merged: b.add(*b.qk(K0, nA, PC))
    b.pv(V1_, act(2), PA); after_pv(2)
    if act(3):
        if merged: b.add(*b.qk(K0, nA, PC))
        b.pv(V0_, act(3), PB); after_pv(3)
    fail_note(b)
    if merged:
        b.add(*b.qk(K0, nB, PC))
        b.rotate(kd=sKD); b.barrier(['#n0'])
        b.kread(K0, 0)
        next_params(b)
        b.wait(R('a', K0, 32))
    return b.p, KIN, [['#t1']] * 8 + [['#t2']] * 8

def init_block():
    b = Blk()
    b.add(valu(f"v_subrev_u32 v{vK}, 0x2000, v{vK}", [f"v{vK}"], [f"v{vK}"]))
    b.tile_dma('#t2', last=True)
    b.add(salu(f"s_cmp_eq_u32 s{sMODE}, 2", [f"s{sMODE}"], ['scc']),
          salu(f"s_cselect_b32 s{sT+5}, -1, 0", ['scc'], [f"s{sT+5}"]))
    for e in range(16): b.add(valu(f"v_and_b32 v{PB+e}, s{sT+5}, v{PC+e}", [f"s{sT+5}", f"v{PC+e}"], [f"v{PB+e}"]))
    for e in range(0, 128, 2): b.add(valu(f"v_mov_b64 v[{O_+e}:{O_+e+1}], 0", [], R('v', O_ + e, 2)))
    for e in range(16): b.add(valu(f"v_accvgpr_write_b32 a{L_+e}, 0", [], [f"a{L_+e}"]))
    return b.p, KIN, [['#t1']] * 8

def f32(x): return struct.unpack('<I', struct.pack('<f', x))[0]

def prologue():
    t = f"""
    s_cmp_ge_u32 s2, 256
    s_cbranch_scc1 L_end
{"    s_mov_b32 s100, 0" + chr(10) + text(stamp()) if OPT['stamp'] else ""}    s_getpc_b64 s[4:5]
L_pc:
    s_lshr_b32 s3, s2, 3
    s_lshl_b32 s3, s3, 7
    s_add_u32 s4, s4, s3
    s_addc_u32 s5, s5, 0
    s_add_u32 s4, s4, L_table-L_pc
    s_addc_u32 s5, s5, 0
    s_load_dwordx4 s[{sT}:{sT+3}], s[0:1], 0
    s_load_dwordx2 s[{sT+4}:{sT+5}], s[0:1], 16
    s_load_dwordx2 s[{sT+6}:{sT+7}], s[0:1], 32
    s_load_dwordx16 s[{sJ}:{sJ+15}], s[4:5], 0
    s_load_dwordx16 s[{sJ+16}:{sJ+31}], s[4:5], 64
    v_lshrrev_b32 v1, 6, v0
    v_and_b32 v0, 63, v0
    v_readfirstlane_b32 s{sW}, v1
    v_and_b32 v2, 3, v0                 ; pos / c8
    v_bfe_u32 v3, v0, 2, 3
    v_lshrrev_b32 v4, 5, v0             ; s2
    v_lshlrev_b32 v4, 6, v4
    s_lshl_b32 s{sW2K}, s{sW}, 11
    s_lshl_b32 s6, s{sW}, 14            ; w*8 rows*2048
    s_and_b32 s7, s{sW}, 1
    s_lshl_b32 s7, s7, 1
    v_lshl_add_u32 v5, v3, 11, v4
    v_add_u32 v5, s6, v5
    v_xor_b32 v6, s7, v2
    v_lshl_add_u32 v{vDK}, v6, 4, v5
    v_lshrrev_b32 v6, 2, v3
    v_lshlrev_b32 v6, 1, v6
    v_xor_b32 v6, v6, v2
    v_lshl_add_u32 v{vDV}, v6, 4, v5
    v_lshl_add_u32 v5, v3, 12, v4
    v_lshl_add_u32 v{vDQ0}, v2, 4, v5
    v_xor_b32 v6, 2, v2
    v_lshl_add_u32 v{vDQ1}, v6, 4, v5
    v_add_u32 v{vDQ1}, 0x8000, v{vDQ1}
    s_add_u32 s{sQL}, s6, {LQ}
    s_and_b32 s3, s2, 7
    s_lshl_b32 s7, s3, 9
    s_lshl_b32 s3, s3, 8
    s_mov_b32 s{sQ+3}, 0x20000
    s_mov_b32 s{sK0+3}, 0x20000
    s_mov_b32 s{sK1+3}, 0x20000
    s_mov_b32 s{sV+3}, 0x20000
    s_mov_b32 s{sO+3}, 0x20000
    s_mov_b32 s{sNEG}, 0xffff8000
    s_mov_b32 s{sRD}, 0x8000
    s_waitcnt lgkmcnt(0)
    s_add_u32 s{sQ}, s{sT}, s7
    s_addc_u32 s{sQ+1}, s{sT+1}, 0
    s_add_u32 s{sK0}, s{sT+2}, s3
    s_addc_u32 s{sK0+1}, s{sT+3}, 0
    s_mov_b32 s{sK1}, s{sK0}
    s_mov_b32 s{sK1+1}, s{sK0+1}
    s_add_u32 s{sV}, s{sT+4}, s3
    s_addc_u32 s{sV+1}, s{sT+5}, 0
    s_add_u32 s{sO}, s{sT+6}, s7
    s_addc_u32 s{sO+1}, s{sT+7}, 0
"""
    b = Blk()
    q_params(b, sJ); kv_switch(b, sJ)
    b.add(salu(f"s_lshl_b32 s{sT+1}, s{sKD}, 3", [f"s{sKD}"], [f"s{sT+1}", 'scc']),
          salu(f"s_add_u32 s{sT+1}, s{sT+1}, s{sVO}", [f"s{sT+1}", f"s{sVO}"], [f"s{sT+1}", 'scc']),
          salu(f"s_max_i32 s{sT+1}, s{sT+1}, 0", [f"s{sT+1}"], [f"s{sT+1}", 'scc']))
    for hb in range(2): b.dma1(sW2K, LK + 0x8000 + 8192 + hb * 1024, hb * 128, vDK, sK0, sT + 1, OPT['ldkv'], '#h0')
    qt = [tok('q') for _ in range(4)]
    b.q_dma(qt, sNA, sNB)
    b.add(salu(f"s_mov_b32 s{sWR}, s{sW2K}", [], [f"s{sWR}"]))
    b.tile_dma('#n0', clamp=True)
    b.add(salu(f"s_add_u32 s{sWR}, s{sW2K}, 0x4000", [], [f"s{sWR}", 'scc']))
    b.tile_dma('#n1')
    cur_params(b)
    seq1, _, vm = legalize(b.p, hoist=False)
    t2 = f"""
    s_mov_b32 s{sC}, {hex(f32(math.log2(math.e) / math.sqrt(128)))}
    s_mov_b32 s{sLO}, {hex(f32(2.0**-40))}
    s_mov_b32 s{sRNG}, {hex(f32(2.0**40) - f32(2.0**-40))}
    s_mov_b32 s{sFAIL}, 0
    s_mov_b32 s{sBIT}, 1
    s_mov_b64 s[{sBAD}:{sBAD+1}], 0
    v_lshrrev_b32 v3, 4, v0             ; g
    v_bfe_u32 v4, v0, 3, 1              ; (l%16)/8
    v_and_b32 v5, 7, v0
    v_lshlrev_b32 v6, 1, v4
    v_xor_b32 v6, v6, v3
    v_lshlrev_b32 v6, 4, v6
    v_lshl_add_u32 v6, v5, 6, v6
    v_lshl_add_u32 v6, v4, 11, v6       ; laneK
    v_add_u32 v{vK}, {LK+0x8000}, v6
    v_add_u32 v{vQ}, s{sQL}, v6
    v_lshrrev_b32 v4, 5, v0             ; g/2
    v_bfe_u32 v5, v0, 2, 3              ; 4*(g%2)+r
    v_and_b32 v6, 1, v3                 ; g%2
    v_lshlrev_b32 v7, 3, v2
    v_lshl_add_u32 v7, v5, 6, v7
    v_lshl_add_u32 v7, v4, 11, v7
    v_add_u32 v7, {LV+0x8000}, v7
    v_lshl_add_u32 v{vV0}, v6, 5, v7
    v_xor_b32 v{vV1}, 32, v{vV0}
    v_and_b32 v5, 15, v0                ; q
    v_lshlrev_b32 v7, 4, v4
    v_lshl_add_u32 v7, v6, 5, v7
    v_lshl_add_u32 v{vST}, v5, 12, v7
    v_lshlrev_b32 v3, 2, v3
    v_sub_u32 v5, v5, v3                ; q - 4g
    v_mov_b32 v7, 0xff800000
    v_mov_b32 v6, 0x3f803f80
"""
    for r in range(4):
        t2 += f"    v_cmp_gt_i32 vcc, {r}, v5\n    v_accvgpr_write_b32 a{ONES+r}, v6\n    s_nop 0\n    v_cndmask_b32 v{TRI+r}, 0, v7, vcc\n"
    b = Blk()
    b.barrier(['#h0'])
    b.kread(K0, 1)
    for qb in range(4):
        b.qread(qb, [qt[qb]])
    b.add(*b.qk(K0, [(kb, qb, 'full') for qb in range(4) for kb in range(2)], PC))
    b.rotate(kd=sKD); b.barrier(['#n0'], at=32)
    b.kread(K0, 0)
    b.wait(R('a', K0, 32))
    seq2, lg, vm2 = legalize(schedule(b.p), vm_in=vm)
    return t + text(seq1) + t2, seq2

def build(p, lg, vm, name, sched=True):
    seq = schedule(p) if sched else p
    seq, lo, vo = legalize(seq, lg, vm)
    nm = sum(i.cls == 'mfma' for i in seq); nn = sum(states(i) for i in seq if i.cls == 'nop')
    print(f"; {name}: {len(seq)} instrs, {nm} mfma, est {estimate(seq)} cyc (ideal {ideal(seq)}), nops {nn}, waits {sum(i.cls=='wait' for i in seq)}, lgkm_out {len(lo)} vm_out {len(vo)}", file=sys.stderr)
    return seq

def stamp():
    if not OPT['stamp']: return []
    t = ["s_memrealtime s[96:97]", "s_memtime s[98:99]", "s_waitcnt lgkmcnt(0)", "s_mov_b32 m0, s100", "s_nop 0",
         "v_writelane_b32 v240, s96, m0", "v_writelane_b32 v241, s98, m0", "s_add_u32 s100, s100, 1"]
    return [I(x, 'salu') for x in t]
def br(txt): return I(txt, 'br')
def lab(n): return I(n, 'label')

def dispatch_mode():
    return [salu(f"s_cmp_eq_u32 s{sMODE}, 0", [f"s{sMODE}"], ['scc']), br("s_cbranch_scc1 L_Fe"),
            salu(f"s_cmp_eq_u32 s{sMODE}, 1", [f"s{sMODE}"], ['scc']), br("s_cbranch_scc1 L_Fo"), br("s_branch L_init")]

def kernel(slots):
    pre, p0 = prologue()
    B = {}
    B['P0'] = stamp() + p0 + stamp() + dispatch_mode()
    B['Fe'] = build(*ms('A', True), 'Fe') + [salu(f"s_cmp_eq_u32 s{sCNT}, 0", [], ['scc']), br("s_cbranch_scc1 L_tail")]
    B['B'] = build(*ms('B'), 'msB')
    B['A'] = build(*ms('A'), 'msA') + [salu(f"s_cmp_lg_u32 s{sCNT}, 0", [], ['scc']), br("s_cbranch_scc1 L_B")]
    B['tail'] = stamp() + [salu(f"s_cmp_eq_u32 s{sJ+4}, 0", [], ['scc']), br("s_cbranch_scc1 L_fin")]
    for w in (1, 2, 3): B['tail'] += [salu(f"s_cmp_eq_u32 s{sW}, {w}", [], ['scc']), br(f"s_cbranch_scc1 L_T{w}")]
    for w in range(4): B[f'T{w}'] = build(*tail(w, True), f'T{w}') + stamp() + dispatch_mode()
    B['Fo'] = build(*ms('B', True), 'Fo') + [br("s_branch L_A")]
    B['init'] = build(*init_block(), 'init', sched=False) + [br("s_branch L_tail")]
    B['fin'] = []
    for w in (1, 2, 3): B['fin'] += [salu(f"s_cmp_eq_u32 s{sW}, {w}", [], ['scc']), br(f"s_cbranch_scc1 L_U{w}")]
    for w in range(4): B[f'U{w}'] = build(*tail(w, False), f'U{w}') + [br("s_branch L_done")]
    ent = ['P0'] + [f'T{w}' for w in range(4)]
    edges = [(a, x) for a in ent for x in ('Fe', 'Fo', 'init')] + [('Fe', 'B'), ('B', 'A'), ('A', 'B'), ('Fo', 'A')]
    edges += [(a, f'{x}{w}') for a in ('Fe', 'A', 'init') for x in 'TU' for w in range(4)]
    for a, x in edges:
        pa = [i for i in B[a] if i.cls not in ('br',)][-16:]
        bad = check_hazards(pa + B[x][:16], start=len(pa))
        assert not bad, (a, x, bad)
    order = ['P0', 'Fe', 'B', 'A', 'tail', 'T0', 'T1', 'T2', 'T3', 'Fo', 'init', 'fin', 'U0', 'U1', 'U2', 'U3']
    s = f"""; varlen causal GQA flash attention, generated by gen/gen.py (hand-written generator)
; @launch grid=(256,1,1) block=(256,1,1) lds=163840
.amdgcn_target "amdgcn-amd-amdhsa--gfx950"
.text
.globl {NAME}
.p2align 8
.type {NAME},@function
{NAME}:
""" + pre
    for k in order:
        s += f"L_{k}:\n" + text(B[k])
    s += "L_done:\n"
    if OPT['stamp']:
        s += text(stamp()) + "    s_waitcnt vmcnt(0)\n" + text(stamp())
        s += f"""    s_load_dwordx2 s[4:5], s[0:1], 48
    s_waitcnt lgkmcnt(0)
    s_mov_b32 s6, 0x100000
    s_mov_b32 s7, 0x20000
    v_mbcnt_lo_u32_b32 v0, -1, 0
    v_mbcnt_hi_u32_b32 v0, -1, v0
    v_lshlrev_b32 v0, 3, v0
    s_lshl_b32 s3, s2, 2
    s_add_u32 s3, s3, s{sW}
    s_lshl_b32 s3, s3, 9
    s_getreg_b32 s96, hwreg(HW_REG_XCC_ID)
    s_getreg_b32 s97, hwreg(HW_REG_HW_ID)
    v_writelane_b32 v240, s96, 63
    v_writelane_b32 v241, s97, 63
    v_writelane_b32 v240, s100, 62
    buffer_store_dwordx2 v[240:241], v0, s[4:7], s3 offen
"""
        if OPT.get('dbg'):
            s += f"""    s_load_dwordx2 s[4:5], s[0:1], 40
    s_waitcnt lgkmcnt(0)
    s_mov_b32 s6, 0x100
    v_readlane_b32 s96, v240, 0
    v_readlane_b32 s97, v240, 1
    v_readlane_b32 s98, v240, 2
    s_sub_u32 s99, s100, 1
    s_nop 4
    v_readlane_b32 s99, v240, s99
    s_nop 4
    s_not_b32 s101, s96
    v_mov_b32 v1, s101
    v_mov_b32 v2, s96
    v_mov_b32 v3, s97
    v_mov_b32 v4, s98
    v_mov_b32 v5, s99
    v_mov_b32 v0, 0
    s_mov_b64 exec, 1
    buffer_atomic_umax v1, v0, s[4:7], 0 offen offset:0
    buffer_atomic_umax v2, v0, s[4:7], 0 offen offset:4
    buffer_atomic_umax v3, v0, s[4:7], 0 offen offset:8
    buffer_atomic_umax v4, v0, s[4:7], 0 offen offset:12
    buffer_atomic_umax v5, v0, s[4:7], 0 offen offset:16
    s_mov_b64 exec, 0xff
    s_cmp_eq_u32 s3, 0
    s_cbranch_scc0 L_end
    v_mbcnt_lo_u32_b32 v0, -1, 0
    v_lshlrev_b32 v0, 2, v0
    v_subrev_u32 v240, s96, v240
    buffer_store_dword v240, v0, s[4:7], 0 offen offset:32
"""
    s += "L_end:\n    s_endpgm\n.p2align 7\nL_table:\n"
    for sl in slots:
        assert len(sl) <= 7
        w = sum((J.enc(j) for j in sl), []); w += [0] * (32 - len(w))
        s += "    .long " + ", ".join(hex(x) for x in w) + "\n"
    s += f""".section .rodata,"a"
.p2align 6
.amdhsa_kernel {NAME}
  .amdhsa_next_free_vgpr 512
  .amdhsa_next_free_sgpr 102
  .amdhsa_accum_offset 256
  .amdhsa_group_segment_fixed_size 0
  .amdhsa_kernarg_size 56
  .amdhsa_user_sgpr_count 2
  .amdhsa_user_sgpr_kernarg_segment_ptr 1
  .amdhsa_system_sgpr_workgroup_id_x 1
.end_amdhsa_kernel
"""
    return s

if __name__ == "__main__":
    out = sys.argv[1] if len(sys.argv) > 1 else "standalone__ragged_sequences_varlen_flash_attn__ragged.s"
    for a in sys.argv[2:]:
        k, v = a.split('='); OPT[k] = v
    slots, _ = J.pack(J.make_jobs())
    if OPT.get('dup'): slots = [s + s for s in slots]
    open(out, "w").write(kernel(slots))
```

```python
import sys, struct, math
from ir import *
import jobs as J

NAME = "standalone__ragged_sequences_varlen_flash_attn__ragged_kernel"
OPT = dict(ldq="nt", ldkv="", st="", stamp=False)

O_, S_, PA, PB, PC, TRI = 0, 128, 160, 176, 192, 208
vK, vV0, vV1, vDK, vDV, vDQ0, vDQ1, vQ, vST = 212, 213, 214, 215, 216, 217, 218, 219, 220
vINV, vT = 224, 228
Q_, K0, V0_, L_, ONES, K1, V1_ = 0, 64, 96, 128, 144, 148, 180
sQ, sK0, sK1, sV, sO = 8, 12, 16, 20, 24
sC, sW, sCNT, sWR, sDL, sRD, sVO, sVO1, sKO1, sW2K = 28, 29, 30, 31, 32, 33, 34, 35, 36, 37
sQA, sQB = 38, 39
sJ = 40
sH0, sFAIL, sBIT, sNEG, sLO, sRNG, sQL, sMODE, sNA, sNB, sKD = 72, 73, 74, 75, 76, 77, 78, 79, 80, 81, 82
sBAD, sCM, sT = 84, 86, 88
LK, LV, LQ = 0, 49152, 98304

uid = [0]
def tok(p):
    uid[0] += 1; return f"#{p}{uid[0]}"

def srd(b): return R('s', b, 4)

class Blk:
    def __init__(s): s.p = []; s.reads = []; s.gate = []
    def add(s, *i): s.p.extend(i)
    def kread(s, kbuf, half, kbs=(0, 1), at=0, step=1):
        n = 0
        for kb in kbs:
            for st in range(4):
                t = tok('r'); s.reads.append(t); d = kbuf + kb * 16 + st * 4
                s.add(I(f"ds_read_b128 {rs('a',d,4)}, v{vK} offset:{half*8192+kb*4096+st*512}", 'ds',
                        rd=[f"v{vK}"] + s.gate, wr=R('a', d, 4) + [t], at=at + n * step)); n += 1
    def vread(s, vbuf, half, at=0):
        for db in range(8):
            for u in range(2):
                t = tok('r'); s.reads.append(t); d = vbuf + db * 4 + u * 2; va = vV1 if db & 1 else vV0
                s.add(I(f"ds_read_b64_tr_b16 {rs('a',d,2)}, v{va} offset:{half*8192+u*4096+(db//2)*512}", 'ds',
                        rd=[f"v{va}"] + s.gate, wr=R('a', d, 2) + [t], at=at))
    def qread(s, qb, dep):
        for st in range(4):
            d = Q_ + qb * 16 + st * 4
            s.add(I(f"ds_read_b128 {rs('a',d,4)}, v{vQ} offset:{qb*4096+st*512}", 'ds',
                    rd=[f"v{vQ}"] + dep, wr=R('a', d, 4)))
    def qk(s, kbuf, blocks, pout):
        flip = False; sm = []
        for kb, qb, kind in blocks:
            p = pout + qb * 4 + kb * 2; d = S_ + kb * 16 + qb * 4
            if kind == 'zero':
                for e in range(2): sm.append(valu(f"v_mov_b32 v{p+e}, 0", [], [f"v{p+e}"]))
                continue
            order = [3, 2, 1, 0] if flip else [0, 1, 2, 3]; flip = not flip
            for n, st in enumerate(order):
                c = None if n else ('z' if kind == 'full' else TRI)
                s.add(mfma('v', d, 'a', kbuf + kb * 16 + st * 4, 'a', Q_ + qb * 16 + st * 4, c))
            for e in range(2):
                a, b = d + 2 * e, d + 2 * e + 1
                sm += [valu(f"v_mul_f32 v{a}, s{sC}, v{a}", [f"v{a}"], [f"v{a}"]),
                       valu(f"v_mul_f32 v{b}, s{sC}, v{b}", [f"v{b}"], [f"v{b}"]),
                       I(f"v_exp_f32 v{a}, v{a}", 'trans', [f"v{a}"], [f"v{a}"]),
                       I(f"v_exp_f32 v{b}, v{b}", 'trans', [f"v{b}"], [f"v{b}"]),
                       valu(f"v_cvt_pk_bf16_f32 v{p+e}, v{a}, v{b}", [f"v{a}", f"v{b}"], [f"v{p+e}"])]
        return sm
    def pv(s, vbuf, qbs, pin, first=False):
        c = 'z' if first else None
        qs = list(qbs)
        for qb in qs: s.add(mfma('a', L_ + qb * 4, 'a', ONES, 'v', pin + qb * 4, c))
        for db in range(8):
            qs = qs[::-1]
            for qb in qs: s.add(mfma('v', O_ + qb * 32 + db * 4, 'a', vbuf + db * 4, 'v', pin + qb * 4, c))
    def barrier(s, certify, at=0, kdelta=None):
        t = tok('b'); w = tok('w')
        s.add(I("WAIT", 'wait', rd=list(certify) + s.reads + s.gate, wr=[w], at=max(at - 1, 0)))
        s.add(I("s_barrier", 'bar', rd=[w], wr=[t], at=at))
        s.reads = []; s.gate = [t]
    def wait(s, regs, at=0):
        s.add(I("WAIT", 'wait', rd=list(regs), wr=list(regs), at=at))
    def rotate(s, kd=sDL):
        s.add(salu(f"s_add_u32 s{sWR}, s{sRD}, s{sW2K}", [f"s{sRD}"], [f"s{sWR}", 'scc']),
              salu(f"s_cmp_eq_u32 s{sRD}, 0x8000", [f"s{sRD}"], ['scc']),
              salu(f"s_cselect_b32 s{sDL}, s{sNEG}, 0x4000", ['scc'], [f"s{sDL}"]),
              salu(f"s_add_u32 s{sRD}, s{sRD}, s{sDL}", [f"s{sRD}", f"s{sDL}"], [f"s{sRD}", 'scc']))
        if kd != sDL:
            s.add(salu(f"s_add_u32 s{kd}, s{kd}, s{sDL}", [f"s{kd}", f"s{sDL}"], [f"s{kd}", 'scc']))
        s.add(valu(f"v_add_u32 v{vK}, s{kd}, v{vK}", [f"s{kd}", f"v{vK}"], [f"v{vK}"]))
        for r in (vV0, vV1):
            s.add(valu(f"v_add_u32 v{r}, s{sDL}, v{r}", [f"s{sDL}", f"v{r}"], [f"v{r}"]))
    def dma1(s, base, ldsoff, imm, vo, sr, so, fl, t, at=0):
        s.add(salu(f"s_add_u32 m0, s{base}, {ldsoff-imm}", [f"s{base}"], ['m0', 'scc'], at=max(at - 1, 0)),
              I(f"buffer_load_dwordx4 v{vo}, {rs('s',sr,4)}, s{so} offen offset:{imm} {fl} lds".replace("  ", " "), 'dma',
                rd=['m0', f"v{vo}", f"s{so}"] + srd(sr) + s.gate, wr=[t], at=at))
    def tile_dma(s, t, last=None, clamp=False, at=0, step=0):
        fl = OPT['ldkv']
        s.add(salu(f"s_add_u32 s{sVO1}, s{sVO}, 0x10000", [f"s{sVO}"], [f"s{sVO1}", 'scc']),
              salu(f"s_add_u32 s{sKO1}, s{sVO}, 0x20000", [f"s{sVO}"], [f"s{sKO1}", 'scc']))
        vo = sVO
        if clamp:
            vo = sT
            s.add(salu(f"s_max_i32 s{sT}, s{sVO}, 0", [f"s{sVO}"], [f"s{sT}", 'scc']),
                  salu(f"s_max_i32 s{sVO1}, s{sVO1}, 0", [f"s{sVO1}"], [f"s{sVO1}", 'scc']))
        if last is True:
            s.add(salu(f"s_mov_b32 s{sKO1}, s{sH0}", [f"s{sH0}"], [f"s{sKO1}"]),
                  salu(f"s_mov_b32 s{sK1+2}, s{sJ+6}", [f"s{sJ+6}"], [f"s{sK1+2}"]))
        elif last is not None:
            s.add(salu(f"s_cmp_eq_u32 s{sCNT}, {last}", [f"s{sCNT}"], ['scc']),
                  salu(f"s_cselect_b32 s{sKO1}, s{sH0}, s{sKO1}", ['scc', f"s{sH0}", f"s{sKO1}"], [f"s{sKO1}"]),
                  salu(f"s_cselect_b32 s{sK1+2}, s{sJ+6}, s{sK0+2}", ['scc', f"s{sJ+6}", f"s{sK0+2}"], [f"s{sK1+2}"]))
        n = 0
        for (lds, vreg, sr, so) in ((LK, vDK, sK0, sVO1), (LV, vDV, sV, vo), (LK + 8192, vDK, sK1, sKO1), (LV + 8192, vDV, sV, sVO1)):
            for hb in range(2):
                s.dma1(sWR, lds + hb * 1024, hb * 128, vreg, sr, so, fl, t, at=at + n * step); n += 1
        s.add(salu(f"s_add_u32 s{sVO}, s{sVO}, 0x20000", [f"s{sVO}"], [f"s{sVO}", 'scc']))
    def q_dma(s, toks, sa, sb, at=0, step=0):
        g = s.gate; s.gate = []; n = 0
        for qb in range(4):
            for rg in range(2):
                for hb in range(2):
                    s.dma1(sQL, qb * 4096 + rg * 2048 + hb * 1024, (qb & 1) * 256 + hb * 128, vDQ1 if rg else vDQ0, sQ,
                           sb if qb >= 2 else sa, OPT['ldq'], toks[qb], at=at + n * step); n += 1
        s.gate = g
    def epilogue(s, qb):
        inv = vINV + qb; t = vT + qb
        s.add(valu(f"v_accvgpr_read_b32 v{t}, a{L_+qb*4}", [f"a{L_+qb*4}"], [f"v{t}"]),
              I(f"v_rcp_f32 v{inv}, v{t}", 'trans', [f"v{t}"], [f"v{inv}"]),
              valu(f"v_subrev_u32 v{t}, s{sLO}, v{t}", [f"v{t}"], [f"v{t}"]),
              valu(f"v_cmp_le_u32 s[{sCM}:{sCM+1}], s{sRNG}, v{t}", [f"v{t}"], R('s', sCM, 2)),
              salu(f"s_or_b64 s[{sBAD}:{sBAD+1}], s[{sBAD}:{sBAD+1}], s[{sCM}:{sCM+1}]", R('s', sCM, 2) + R('s', sBAD, 2), R('s', sBAD, 2) + ['scc']))
        so = sQB if qb >= 2 else sQA
        for m in range(4):
            o = O_ + qb * 32 + m * 8
            for e in range(8): s.add(valu(f"v_mul_f32 v{o+e}, v{inv}, v{o+e}", [f"v{inv}", f"v{o+e}"], [f"v{o+e}"]))
            for e in range(4): s.add(valu(f"v_cvt_pk_bf16_f32 v{o+e}, v{o+2*e}, v{o+2*e+1}", [f"v{o+2*e}", f"v{o+2*e+1}"], [f"v{o+e}"]))
            for e in range(2): s.add(I(f"v_permlane16_swap_b32 v{o+e}, v{o+2+e}", 'perm', [f"v{o+e}", f"v{o+2+e}"], [f"v{o+e}", f"v{o+2+e}"]))
            s.add(I(f"buffer_store_dwordx4 {rs('v',o,4)}, v{vST}, {rs('s',sO,4)}, s{so} offen offset:{(qb&1)*256+m*64} {OPT['st']}".rstrip(), 'vst',
                    rd=R('v', o, 4) + [f"v{vST}", f"s{so}"] + srd(sO), wr=[]))

FULL = [(kb, qb, 'full') for kb in range(2) for qb in range(4)]
KIN = []

def ms(kind, first=False):
    b = Blk(); A = kind == 'A'
    pin = PC if first else (PA if A else PB); pout = PB if A else PA
    if first and not A:
        b.add(valu(f"v_subrev_u32 v{vK}, 0x2000, v{vK}", [f"v{vK}"], [f"v{vK}"]))
    b.vread(V0_, 0 if A else 1)
    if A: b.tile_dma('#t2', last=(0 if first else 1), at=10, step=6)
    elif first: b.tile_dma('#t2', at=8, step=3)
    sm = b.qk(K0, FULL, pout); b.add(*sm)
    if not A:
        b.rotate(); b.barrier(['#t1'], at=33)
    else: b.wait(R('a', V0_, 32), at=33)
    b.pv(V0_, range(4), pin, first)
    b.kread(K0, 1 if A else 0, at=36, step=3)
    b.wait(R('a', K0, 32), at=66)
    if A and not first:
        b.add(salu(f"s_sub_u32 s{sCNT}, s{sCNT}, 1", [f"s{sCNT}"], [f"s{sCNT}", 'scc'], at=60))
    vm_in = [['#t1']] * 8 + ([] if (A or first) else [['#t2']] * 8)
    return b.p, KIN, vm_in

def diag(tb, i):
    if 2 * i > tb: return None
    k0 = 'tri' if 2 * i == tb else 'full'
    k1 = 'zero' if 2 * i + 1 > tb else ('tri' if 2 * i + 1 == tb else 'full')
    return k0, k1

def next_params(b):
    for k in range(0, 28, 2):
        b.add(salu(f"s_mov_b64 s[{sJ+k}:{sJ+k+1}], s[{sJ+k+4}:{sJ+k+5}]", R('s', sJ + k + 4, 2), R('s', sJ + k, 2)))
    cur_params(b)
def cur_params(b):
    b.add(salu(f"s_mov_b32 s{sQA}, s{sNA}", [f"s{sNA}"], [f"s{sQA}"]),
          salu(f"s_mov_b32 s{sQB}, s{sNB}", [f"s{sNB}"], [f"s{sQB}"]),
          salu(f"s_mov_b32 s{sO+2}, s{sJ+3}", [f"s{sJ+3}"], [f"s{sO+2}"]),
          salu(f"s_and_b32 s{sCNT}, s{sJ}, 0xff", [f"s{sJ}"], [f"s{sCNT}", 'scc']),
          salu(f"s_sub_u32 s{sCNT}, s{sCNT}, 3", [f"s{sCNT}"], [f"s{sCNT}", 'scc']),
          salu(f"s_and_b32 s{sT+1}, s{sJ+4}, 0x300", [f"s{sJ+4}"], [f"s{sT+1}", 'scc']),
          salu(f"s_cselect_b32 s{sT+1}, 0x10000, 0", ['scc'], [f"s{sT+1}"]),
          salu(f"s_add_u32 s{sH0}, s{sJ+5}, s{sT+1}", [f"s{sJ+5}", f"s{sT+1}"], [f"s{sH0}", 'scc']),
          salu(f"s_max_i32 s{sH0}, s{sH0}, 0", [f"s{sH0}"], [f"s{sH0}", 'scc']))
def q_params(b, j):
    b.add(salu(f"s_and_b32 s{sT+2}, s{j}, 0xfffff000", [f"s{j}"], [f"s{sT+2}", 'scc']),
          salu(f"s_lshl_b32 s{sT+3}, s{sW}, 16", [], [f"s{sT+3}", 'scc']),
          salu(f"s_add_u32 s{sNA}, s{sT+2}, s{sT+3}", [f"s{sT+2}", f"s{sT+3}"], [f"s{sNA}", 'scc']),
          salu(f"s_sub_u32 s{sNB}, s{sT+2}, s{sT+3}", [f"s{sT+2}", f"s{sT+3}"], [f"s{sNB}", 'scc']),
          salu(f"s_add_u32 s{sNB}, s{sNB}, 0x70000", [f"s{sNB}"], [f"s{sNB}", 'scc']),
          salu(f"s_mov_b32 s{sQ+2}, s{j+3}", [f"s{j+3}"], [f"s{sQ+2}"]),
          salu(f"s_bfe_u32 s{sMODE}, s{j}, 0x20008", [f"s{j}"], [f"s{sMODE}", 'scc']),
          salu(f"s_cselect_b32 s{sKD}, 0x2000, 0", ['scc'], [f"s{sKD}"]))
def kv_switch(b, j):
    b.add(salu(f"s_mov_b32 s{sVO}, s{j+1}", [f"s{j+1}"], [f"s{sVO}"]))
    for r in (sK0, sK1, sV):
        b.add(salu(f"s_mov_b32 s{r+2}, s{j+2}", [f"s{j+2}"], [f"s{r+2}"]))
def fail_note(b):
    b.add(salu(f"s_cmp_lg_u64 s[{sBAD}:{sBAD+1}], 0", R('s', sBAD, 2), ['scc']),
          salu(f"s_cselect_b32 s{sT+4}, s{sBIT}, 0", ['scc', f"s{sBIT}"], [f"s{sT+4}"]),
          salu(f"s_or_b32 s{sFAIL}, s{sFAIL}, s{sT+4}", [f"s{sFAIL}", f"s{sT+4}"], [f"s{sFAIL}", 'scc']),
          salu(f"s_lshl_b32 s{sBIT}, s{sBIT}, 1", [f"s{sBIT}"], [f"s{sBIT}", 'scc']),
          salu(f"s_mov_b64 s[{sBAD}:{sBAD+1}], 0", [], R('s', sBAD, 2)))

def tail(w, merged):
    b = Blk(); tbs = {0: w, 1: w, 2: 7 - w, 3: 7 - w}
    act = lambda i: [qb for qb in range(4) if diag(tbs[qb], i)]
    def blocks(i):
        return [(kb, qb, diag(tbs[qb], i)[kb]) for kb in range(2) for qb in act(i)]
    def kbs(i): return [kb for kb in range(2) if any(k == kb and kind != 'zero' for k, _, kind in blocks(i))]
    qt = [tok('q') for _ in range(4)]
    kb_ = [K0, K1]; vb_ = [V0_, V1_]; pb_ = [PA, PB]
    lastqk = {qb: max(i for i in range(4) if qb in act(i)) for qb in range(4)}
    def after_qk(i):
        if merged:
            for qb in range(4):
                if lastqk[qb] == i: b.qread(qb, [qt[qb]])
    def after_pv(i):
        for qb in range(4):
            if lastqk[qb] == i: b.epilogue(qb)
    b.vread(V0_, 1)
    if merged:
        q_params(b, sJ + 4); b.q_dma(qt, sNA, sNB, at=8, step=2)
    b.add(*b.qk(K0, blocks(0), PA))
    b.rotate(); b.barrier(['#t1'])
    b.kread(K1, 0, kbs(1)); b.vread(V1_, 0)
    b.pv(V0_, range(4), PB)
    if merged:
        kv_switch(b, sJ + 4); b.tile_dma('#n0', clamp=True)
    b.add(*b.qk(K1, blocks(1), PB))
    b.kread(K0, 1, kbs(2)); b.vread(V0_, 1)
    b.pv(V1_, act(0), PA); after_qk(0); after_pv(0)
    b.add(*b.qk(K0, blocks(2), PA))
    b.rotate(); b.barrier(['#t2'])
    if act(3): b.kread(K1, 0, kbs(3))
    b.vread(V1_, 0)
    b.pv(V0_, act(1), PB); after_qk(1); after_pv(1)
    if merged: b.tile_dma('#n1')
    if act(3): b.add(*b.qk(K1, blocks(3), PB))
    if merged: b.kread(K0, 1)
    if act(3): b.vread(V0_, 1)
    after_qk(2); after_qk(3)
    nA = [(kb, qb, 'full') for kb in range(2) for qb in (0, 1)]
    nB = [(kb, qb, 'full') for kb in range(2) for qb in (2, 3)]
    if not act(3) and merged: b.add(*b.qk(K0, nA, PC))
    b.pv(V1_, act(2), PA); after_pv(2)
    if act(3):
        if merged: b.add(*b.qk(K0, nA, PC))
        b.pv(V0_, act(3), PB); after_pv(3)
    fail_note(b)
    if merged:
        b.add(*b.qk(K0, nB, PC))
        b.rotate(kd=sKD); b.barrier(['#n0'])
        b.kread(K0, 0)
        next_params(b)
        b.wait(R('a', K0, 32))
    return b.p, KIN, [['#t1']] * 8 + [['#t2']] * 8

def init_block():
    b = Blk()
    b.add(valu(f"v_subrev_u32 v{vK}, 0x2000, v{vK}", [f"v{vK}"], [f"v{vK}"]))
    b.tile_dma('#t2', last=True)
    b.add(salu(f"s_cmp_eq_u32 s{sMODE}, 2", [f"s{sMODE}"], ['scc']),
          salu(f"s_cselect_b32 s{sT+5}, -1, 0", ['scc'], [f"s{sT+5}"]))
    for e in range(16): b.add(valu(f"v_and_b32 v{PB+e}, s{sT+5}, v{PC+e}", [f"s{sT+5}", f"v{PC+e}"], [f"v{PB+e}"]))
    for e in range(0, 128, 2): b.add(valu(f"v_mov_b64 v[{O_+e}:{O_+e+1}], 0", [], R('v', O_ + e, 2)))
    for e in range(16): b.add(valu(f"v_accvgpr_write_b32 a{L_+e}, 0", [], [f"a{L_+e}"]))
    return b.p, KIN, [['#t1']] * 8

def f32(x): return struct.unpack('<I', struct.pack('<f', x))[0]

def prologue():
    t = f"""
    s_cmp_ge_u32 s2, 256
    s_cbranch_scc1 L_end
{"    s_mov_b32 s100, 0" + chr(10) + text(stamp()) if OPT['stamp'] else ""}    s_getpc_b64 s[4:5]
L_pc:
    s_lshr_b32 s3, s2, 3
    s_lshl_b32 s3, s3, 7
    s_add_u32 s4, s4, s3
    s_addc_u32 s5, s5, 0
    s_add_u32 s4, s4, L_table-L_pc
    s_addc_u32 s5, s5, 0
    s_load_dwordx4 s[{sT}:{sT+3}], s[0:1], 0
    s_load_dwordx2 s[{sT+4}:{sT+5}], s[0:1], 16
    s_load_dwordx2 s[{sT+6}:{sT+7}], s[0:1], 32
    s_load_dwordx16 s[{sJ}:{sJ+15}], s[4:5], 0
    s_load_dwordx16 s[{sJ+16}:{sJ+31}], s[4:5], 64
    v_lshrrev_b32 v1, 6, v0
    v_and_b32 v0, 63, v0
    v_readfirstlane_b32 s{sW}, v1
    v_and_b32 v2, 3, v0                 ; pos / c8
    v_bfe_u32 v3, v0, 2, 3
    v_lshrrev_b32 v4, 5, v0             ; s2
    v_lshlrev_b32 v4, 6, v4
    s_lshl_b32 s{sW2K}, s{sW}, 11
    s_lshl_b32 s6, s{sW}, 14            ; w*8 rows*2048
    s_and_b32 s7, s{sW}, 1
    s_lshl_b32 s7, s7, 1
    v_lshl_add_u32 v5, v3, 11, v4
    v_add_u32 v5, s6, v5
    v_xor_b32 v6, s7, v2
    v_lshl_add_u32 v{vDK}, v6, 4, v5
    v_lshrrev_b32 v6, 2, v3
    v_lshlrev_b32 v6, 1, v6
    v_xor_b32 v6, v6, v2
    v_lshl_add_u32 v{vDV}, v6, 4, v5
    v_lshl_add_u32 v5, v3, 12, v4
    v_lshl_add_u32 v{vDQ0}, v2, 4, v5
    v_xor_b32 v6, 2, v2
    v_lshl_add_u32 v{vDQ1}, v6, 4, v5
    v_add_u32 v{vDQ1}, 0x8000, v{vDQ1}
    s_add_u32 s{sQL}, s6, {LQ}
    s_and_b32 s3, s2, 7
    s_lshl_b32 s7, s3, 9
    s_lshl_b32 s3, s3, 8
    s_mov_b32 s{sQ+3}, 0x20000
    s_mov_b32 s{sK0+3}, 0x20000
    s_mov_b32 s{sK1+3}, 0x20000
    s_mov_b32 s{sV+3}, 0x20000
    s_mov_b32 s{sO+3}, 0x20000
    s_mov_b32 s{sNEG}, 0xffff8000
    s_mov_b32 s{sRD}, 0x8000
    s_waitcnt lgkmcnt(0)
    s_add_u32 s{sQ}, s{sT}, s7
    s_addc_u32 s{sQ+1}, s{sT+1}, 0
    s_add_u32 s{sK0}, s{sT+2}, s3
    s_addc_u32 s{sK0+1}, s{sT+3}, 0
    s_mov_b32 s{sK1}, s{sK0}
    s_mov_b32 s{sK1+1}, s{sK0+1}
    s_add_u32 s{sV}, s{sT+4}, s3
    s_addc_u32 s{sV+1}, s{sT+5}, 0
    s_add_u32 s{sO}, s{sT+6}, s7
    s_addc_u32 s{sO+1}, s{sT+7}, 0
"""
    b = Blk()
    q_params(b, sJ); kv_switch(b, sJ)
    b.add(salu(f"s_lshl_b32 s{sT+1}, s{sKD}, 3", [f"s{sKD}"], [f"s{sT+1}", 'scc']),
          salu(f"s_add_u32 s{sT+1}, s{sT+1}, s{sVO}", [f"s{sT+1}", f"s{sVO}"], [f"s{sT+1}", 'scc']),
          salu(f"s_max_i32 s{sT+1}, s{sT+1}, 0", [f"s{sT+1}"], [f"s{sT+1}", 'scc']))
    for hb in range(2): b.dma1(sW2K, LK + 0x8000 + 8192 + hb * 1024, hb * 128, vDK, sK0, sT + 1, OPT['ldkv'], '#h0')
    qt = [tok('q') for _ in range(4)]
    b.q_dma(qt, sNA, sNB)
    b.add(salu(f"s_mov_b32 s{sWR}, s{sW2K}", [], [f"s{sWR}"]))
    b.tile_dma('#n0', clamp=True)
    b.add(salu(f"s_add_u32 s{sWR}, s{sW2K}, 0x4000", [], [f"s{sWR}", 'scc']))
    b.tile_dma('#n1')
    cur_params(b)
    seq1, _, vm = legalize(b.p, hoist=False)
    t2 = f"""
    s_mov_b32 s{sC}, {hex(f32(math.log2(math.e) / math.sqrt(128)))}
    s_mov_b32 s{sLO}, {hex(f32(2.0**-40))}
    s_mov_b32 s{sRNG}, {hex(f32(2.0**40) - f32(2.0**-40))}
    s_mov_b32 s{sFAIL}, 0
    s_mov_b32 s{sBIT}, 1
    s_mov_b64 s[{sBAD}:{sBAD+1}], 0
    v_lshrrev_b32 v3, 4, v0             ; g
    v_bfe_u32 v4, v0, 3, 1              ; (l%16)/8
    v_and_b32 v5, 7, v0
    v_lshlrev_b32 v6, 1, v4
    v_xor_b32 v6, v6, v3
    v_lshlrev_b32 v6, 4, v6
    v_lshl_add_u32 v6, v5, 6, v6
    v_lshl_add_u32 v6, v4, 11, v6       ; laneK
    v_add_u32 v{vK}, {LK+0x8000}, v6
    v_add_u32 v{vQ}, s{sQL}, v6
    v_lshrrev_b32 v4, 5, v0             ; g/2
    v_bfe_u32 v5, v0, 2, 3              ; 4*(g%2)+r
    v_and_b32 v6, 1, v3                 ; g%2
    v_lshlrev_b32 v7, 3, v2
    v_lshl_add_u32 v7, v5, 6, v7
    v_lshl_add_u32 v7, v4, 11, v7
    v_add_u32 v7, {LV+0x8000}, v7
    v_lshl_add_u32 v{vV0}, v6, 5, v7
    v_xor_b32 v{vV1}, 32, v{vV0}
    v_and_b32 v5, 15, v0                ; q
    v_lshlrev_b32 v7, 4, v4
    v_lshl_add_u32 v7, v6, 5, v7
    v_lshl_add_u32 v{vST}, v5, 12, v7
    v_lshlrev_b32 v3, 2, v3
    v_sub_u32 v5, v5, v3                ; q - 4g
    v_mov_b32 v7, 0xff800000
    v_mov_b32 v6, 0x3f803f80
"""
    for r in range(4):
        t2 += f"    v_cmp_gt_i32 vcc, {r}, v5\n    v_accvgpr_write_b32 a{ONES+r}, v6\n    s_nop 0\n    v_cndmask_b32 v{TRI+r}, 0, v7, vcc\n"
    b = Blk()
    b.barrier(['#h0'])
    b.kread(K0, 1)
    for qb in range(4):
        b.qread(qb, [qt[qb]])
    b.add(*b.qk(K0, [(kb, qb, 'full') for qb in range(4) for kb in range(2)], PC))
    b.rotate(kd=sKD); b.barrier(['#n0'], at=32)
    b.kread(K0, 0)
    b.wait(R('a', K0, 32))
    seq2, lg, vm2 = legalize(schedule(b.p), vm_in=vm)
    return t + text(seq1) + t2, seq2

def build(p, lg, vm, name, sched=True):
    seq = schedule(p) if sched else p
    seq, lo, vo = legalize(seq, lg, vm)
    nm = sum(i.cls == 'mfma' for i in seq); nn = sum(states(i) for i in seq if i.cls == 'nop')
    print(f"; {name}: {len(seq)} instrs, {nm} mfma, est {estimate(seq)} cyc (ideal {ideal(seq)}), nops {nn}, waits {sum(i.cls=='wait' for i in seq)}, lgkm_out {len(lo)} vm_out {len(vo)}", file=sys.stderr)
    return seq

def stamp():
    if not OPT['stamp']: return []
    t = ["s_memrealtime s[96:97]", "s_memtime s[98:99]", "s_waitcnt lgkmcnt(0)", "s_mov_b32 m0, s100", "s_nop 0",
         "v_writelane_b32 v240, s96, m0", "v_writelane_b32 v241, s98, m0", "s_add_u32 s100, s100, 1"]
    return [I(x, 'salu') for x in t]
def br(txt): return I(txt, 'br')
def lab(n): return I(n, 'label')

def dispatch_mode():
    return [salu(f"s_cmp_eq_u32 s{sMODE}, 0", [f"s{sMODE}"], ['scc']), br("s_cbranch_scc1 L_Fe"),
            salu(f"s_cmp_eq_u32 s{sMODE}, 1", [f"s{sMODE}"], ['scc']), br("s_cbranch_scc1 L_Fo"), br("s_branch L_init")]

def kernel(slots):
    pre, p0 = prologue()
    B = {}
    B['P0'] = stamp() + p0 + stamp() + dispatch_mode()
    B['Fe'] = build(*ms('A', True), 'Fe') + [salu(f"s_cmp_eq_u32 s{sCNT}, 0", [], ['scc']), br("s_cbranch_scc1 L_tail")]
    B['B'] = build(*ms('B'), 'msB')
    B['A'] = build(*ms('A'), 'msA') + [salu(f"s_cmp_lg_u32 s{sCNT}, 0", [], ['scc']), br("s_cbranch_scc1 L_B")]
    B['tail'] = stamp() + [salu(f"s_cmp_eq_u32 s{sJ+4}, 0", [], ['scc']), br("s_cbranch_scc1 L_fin")]
    for w in (1, 2, 3): B['tail'] += [salu(f"s_cmp_eq_u32 s{sW}, {w}", [], ['scc']), br(f"s_cbranch_scc1 L_T{w}")]
    for w in range(4): B[f'T{w}'] = build(*tail(w, True), f'T{w}') + stamp() + dispatch_mode()
    B['Fo'] = build(*ms('B', True), 'Fo') + [br("s_branch L_A")]
    B['init'] = build(*init_block(), 'init', sched=False) + [br("s_branch L_tail")]
    B['fin'] = []
    for w in (1, 2, 3): B['fin'] += [salu(f"s_cmp_eq_u32 s{sW}, {w}", [], ['scc']), br(f"s_cbranch_scc1 L_U{w}")]
    for w in range(4): B[f'U{w}'] = build(*tail(w, False), f'U{w}') + [br("s_branch L_done")]
    ent = ['P0'] + [f'T{w}' for w in range(4)]
    edges = [(a, x) for a in ent for x in ('Fe', 'Fo', 'init')] + [('Fe', 'B'), ('B', 'A'), ('A', 'B'), ('Fo', 'A')]
    edges += [(a, f'{x}{w}') for a in ('Fe', 'A', 'init') for x in 'TU' for w in range(4)]
    for a, x in edges:
        pa = [i for i in B[a] if i.cls not in ('br',)][-16:]
        bad = check_hazards(pa + B[x][:16], start=len(pa))
        assert not bad, (a, x, bad)
    order = ['P0', 'Fe', 'B', 'A', 'tail', 'T0', 'T1', 'T2', 'T3', 'Fo', 'init', 'fin', 'U0', 'U1', 'U2', 'U3']
    s = f"""; varlen causal GQA flash attention, generated by gen/gen.py (hand-written generator)
; @launch grid=(256,1,1) block=(256,1,1) lds=163840
.amdgcn_target "amdgcn-amd-amdhsa--gfx950"
.text
.globl {NAME}
.p2align 8
.type {NAME},@function
{NAME}:
""" + pre
    for k in order:
        s += f"L_{k}:\n" + text(B[k])
    s += "L_done:\n"
    if OPT['stamp']:
        s += text(stamp()) + "    s_waitcnt vmcnt(0)\n" + text(stamp())
        s += f"""    s_load_dwordx2 s[4:5], s[0:1], 48
    s_waitcnt lgkmcnt(0)
    s_mov_b32 s6, 0x100000
    s_mov_b32 s7, 0x20000
    v_mbcnt_lo_u32_b32 v0, -1, 0
    v_mbcnt_hi_u32_b32 v0, -1, v0
    v_lshlrev_b32 v0, 3, v0
    s_lshl_b32 s3, s2, 2
    s_add_u32 s3, s3, s{sW}
    s_lshl_b32 s3, s3, 9
    s_getreg_b32 s96, hwreg(HW_REG_XCC_ID)
    s_getreg_b32 s97, hwreg(HW_REG_HW_ID)
    v_writelane_b32 v240, s96, 63
    v_writelane_b32 v241, s97, 63
    v_writelane_b32 v240, s100, 62
    buffer_store_dwordx2 v[240:241], v0, s[4:7], s3 offen
"""
        if OPT.get('spin'):
            a_, b_, k_, n_ = OPT['spin'].split(',')
            s += f"""    s_cmp_ge_u32 s2, {n_}
    s_cbranch_scc1 L_end
    v_readlane_b32 s96, v240, {a_}
    v_readlane_b32 s97, v240, {b_}
    s_sub_u32 s99, s100, 1
    s_nop 4
    v_readlane_b32 s99, v240, s99
    s_nop 4
    s_sub_u32 s96, s97, s96
    s_mul_i32 s96, s96, {k_}
    s_min_u32 s96, s96, 20000
L_spin:
    s_memrealtime s[4:5]
    s_waitcnt lgkmcnt(0)
    s_sub_u32 s4, s4, s99
    s_cmp_lt_u32 s4, s96
    s_cbranch_scc1 L_spin
"""
        if OPT.get('dbg'):
            s += f"""    s_load_dwordx2 s[4:5], s[0:1], 40
    s_waitcnt lgkmcnt(0)
    s_mov_b32 s6, 0x100
    v_readlane_b32 s96, v240, 0
    v_readlane_b32 s97, v240, 1
    v_readlane_b32 s98, v240, 2
    s_sub_u32 s99, s100, 1
    s_nop 4
    v_readlane_b32 s99, v240, s99
    s_nop 4
    s_not_b32 s101, s96
    v_mov_b32 v1, s101
    v_mov_b32 v2, s96
    v_mov_b32 v3, s97
    v_mov_b32 v4, s98
    v_mov_b32 v5, s99
    v_mov_b32 v0, 0
    s_mov_b64 exec, 1
    buffer_atomic_umax v1, v0, s[4:7], 0 offen offset:0
    buffer_atomic_umax v2, v0, s[4:7], 0 offen offset:4
    buffer_atomic_umax v3, v0, s[4:7], 0 offen offset:8
    buffer_atomic_umax v4, v0, s[4:7], 0 offen offset:12
    buffer_atomic_umax v5, v0, s[4:7], 0 offen offset:16
    s_mov_b64 exec, 0xff
    s_cmp_eq_u32 s3, 0
    s_cbranch_scc0 L_end
    v_mbcnt_lo_u32_b32 v0, -1, 0
    v_lshlrev_b32 v0, 2, v0
    v_subrev_u32 v240, s96, v240
    buffer_store_dword v240, v0, s[4:7], 0 offen offset:32
"""
    s += "L_end:\n    s_endpgm\n.p2align 7\nL_table:\n"
    for sl in slots:
        assert len(sl) <= 7
        w = sum((J.enc(j) for j in sl), []); w += [0] * (32 - len(w))
        s += "    .long " + ", ".join(hex(x) for x in w) + "\n"
    s += f""".section .rodata,"a"
.p2align 6
.amdhsa_kernel {NAME}
  .amdhsa_next_free_vgpr 512
  .amdhsa_next_free_sgpr 102
  .amdhsa_accum_offset 256
  .amdhsa_group_segment_fixed_size 0
  .amdhsa_kernarg_size 56
  .amdhsa_user_sgpr_count 2
  .amdhsa_user_sgpr_kernarg_segment_ptr 1
  .amdhsa_system_sgpr_workgroup_id_x 1
.end_amdhsa_kernel
"""
    return s

if __name__ == "__main__":
    out = sys.argv[1] if len(sys.argv) > 1 else "standalone__ragged_sequences_varlen_flash_attn__ragged.s"
    for a in sys.argv[2:]:
        k, v = a.split('='); OPT[k] = v
    slots, _ = J.pack(J.make_jobs())
    if OPT.get('dup'): slots = [s + s for s in slots]
    open(out, "w").write(kernel(slots))
```

```python
import re

VEC4 = ('valu',)
VEC8 = ('trans', 'perm')
MEM = ('ds', 'dsw', 'dma', 'vst', 'vld')
SCAL = ('salu', 'wait', 'bar', 'br', 'nop')

def R(p, a, n=1):
    return [f"{p}{i}" for i in range(a, a + n)]
def rs(p, a, n=1):
    return f"{p}{a}" if n == 1 else f"{p}[{a}:{a+n-1}]"

class I:
    def __init__(s, txt, cls, rd=(), wr=(), c=(), at=0, late=False, grp=None, note=None, lat=0, tmin=0):
        s.txt, s.cls, s.rd, s.wr, s.c = txt, cls, list(rd), list(wr), list(c)
        s.at = at
        s.late = late
        s.grp = grp
        s.note = note
        s.lat = lat
        s.tmin = tmin
    def __repr__(s): return s.txt

def mfma(dp, d, ap, a, bp, b, c=None):
    if c is None: ct, cr = rs(dp, d, 4), R(dp, d, 4)
    elif c == 'z': ct, cr = "0", []
    else: ct, cr = rs(dp, c, 4), R(dp, c, 4)
    return I(f"v_mfma_f32_16x16x32_bf16 {rs(dp,d,4)}, {rs(ap,a,4)}, {rs(bp,b,4)}, {ct}", 'mfma',
             rd=R(ap, a, 4) + R(bp, b, 4) + cr, wr=R(dp, d, 4), c=cr)
def valu(txt, rd, wr, **k): return I(txt, 'valu', rd, wr, **k)
def salu(txt, rd, wr, **k): return I(txt, 'salu', rd, wr, **k)

def cost(i):
    return {'mfma': 8, 'trans': 8, 'perm': 8, 'dma': 8, 'vld': 8, 'vst': 16}.get(i.cls, 4)

def need_ws(p, q):
    w = 0
    pw, pr, qw, qr = set(p.wr), set(p.rd), set(q.wr), set(q.rd)
    isv = lambda x: x.cls in ('valu', 'perm', 'trans', 'pk')
    if p.cls == 'mfma':
        if q.cls == 'mfma':
            ab = qr - set(q.c)
            if pw & ab: w = max(w, 8)
            if pw & set(q.c) and sorted(q.c) != sorted(p.wr): w = max(w, 6)
        elif isv(q) or q.cls in MEM:
            if pw & (qr | qw): w = max(w, 8)
            if isv(q) and set(p.c) & qw: w = max(w, 3)
    if isv(p):
        vw = {r for r in pw if r[0] in 'va' and r != 'vcc'}
        sw = {r for r in pw if r[0] == 's' or r == 'vcc'}
        if q.cls == 'mfma' and vw & qr: w = max(w, 2)
        if q.cls == 'perm' and vw & qr: w = max(w, 2)
        if p.cls == 'trans' and q.cls != 'trans' and vw & qr: w = max(w, 1)
        if isv(q) and sw & qr: w = max(w, 2)
        if q.cls in MEM and sw & qr: w = max(w, 5)
        if 'readfirstlane' in q.txt and vw & qr: w = max(w, 1)
        if 'readlane' in q.txt and vw & qr: w = max(w, 1)
        if 'dpp' in q.txt and vw & qr: w = max(w, 2)
        if q.cls == 'salu' and sw & qr: w = max(w, 1)
    if p.cls == 'salu' and 'm0' in pw and q.cls == 'dma': w = max(w, 1)
    if p.cls == 'vst' and (pr & qw) and q.cls not in SCAL: w = max(w, 2)
    return w

def states(i):
    if i.cls == 'label': return 0
    m = re.match(r's_nop (\d+)', i.txt)
    return int(m.group(1)) + 1 if m else 1

def check_hazards(seq, fix=False, start=0):
    out = list(seq[:start]); bad = []
    for q in seq[start:]:
        need = 0; dist = 0
        for p in reversed(out):
            if dist >= 8: break
            w = need_ws(p, q)
            if w > dist: need = max(need, w - dist); bad.append((p, q, w, dist))
            dist += states(p)
        if need and fix:
            out.append(I(f"s_nop {need-1}", 'nop'))
        out.append(q)
    return out if fix else bad

class Clock:
    def __init__(s): s.t = 0; s.pipe = 0; s.prev = None; s.free = False; s.lastvec = None
    def peek_pen(s, i):
        if i.cls == 'pk': return max(0, s.pipe + 12 - s.t)
        return 8 if (i.cls in MEM and s.lastvec in ('valu', 'perm', 'trans', 'pk')) else 0
    def issue(s, i):
        if i.cls == 'label': return s.t
        if i.cls == 'mfma':
            st = max(s.t, s.pipe); s.t = st + 8; s.pipe = st + 16; s.free = True; s.lastvec = 'mfma'; return st
        if i.cls in SCAL:
            n = states(i)
            if s.free: n -= 1
            s.free = False
            if i.cls == 'bar': s.t = max(s.t, i.tmin) + 22
            st = s.t; s.t += 4 * n; return st
        st = s.t + s.peek_pen(i); s.t = st + cost(i); s.free = False; s.lastvec = i.cls; return st

def estimate(seq):
    c = Clock()
    for i in seq: c.issue(i)
    return max(c.t, c.pipe)

def build_deps(prog, skip=()):
    lastw = {}; readers = {}
    preds = [set() for _ in prog]
    for j, q in enumerate(prog):
        for r in q.rd:
            if r in lastw and r not in skip: preds[j].add(lastw[r])
        for r in q.wr:
            if r in skip: continue
            if r in lastw: preds[j].add(lastw[r])
            for k in readers.get(r, ()): preds[j].add(k)
        for r in q.rd: readers.setdefault(r, []).append(j)
        for r in q.wr: lastw[r] = j; readers[r] = []
        preds[j].discard(j)
    return preds

DS_LAT = 128
SP0 = {'vst': 136, 'dma': 48, 'vld': 48}

def schedule(prog, ds_per_gap=2, max_over=1, info=None, sp=None):
    n = len(prog); preds = build_deps(prog, skip=('scc',))
    SP = dict(SP0); SP.update(sp or {})
    users = {}; last = None
    for j, q in enumerate(prog):
        if 'scc' in q.rd: users.setdefault(last, []).append(j)
        if 'scc' in q.wr: last = j
    assert None not in users
    for d, us in users.items():
        for u in us:
            preds[d] |= {p for p in preds[u] if p != d and p not in us}
            assert all(p < d for p in preds[d]), (prog[d], prog[u])
        for u in us: preds[u].add(d)
        for a, b in zip(us, us[1:]): preds[b].add(a)
    lock = [set()]
    mf = [j for j in range(n) if prog[j].cls == 'mfma']
    for a, b in zip(mf, mf[1:]): preds[b].add(a)
    succ = [[] for _ in prog]
    for j in range(n):
        for p in preds[j]: succ[p].append(j)
    def elat(p, q):
        P = prog[p]
        if P.cls in MEM and set(P.wr) & set(prog[q].rd): return P.lat or (DS_LAT if P.cls == 'ds' else 0)
        return 0
    tot = sum(cost(i) for i in prog if i.cls not in SCAL); per = max(16.0, tot / max(len(mf), 1))
    INF = len(mf) + 1
    idx = {j: k for k, j in enumerate(mf)}
    dl = [INF] * n
    for j in reversed(range(n)):
        if j in idx: dl[j] = idx[j]; continue
        d = INF
        for s_ in succ[j]:
            d = min(d, dl[s_] - elat(j, s_) / per)
        dl[j] = d
    done = [False] * n; when = [0] * n; pos = [0] * n
    out = []; clk = Clock(); nst = [0]; vmfree = [0]
    left = set(j for j in range(n) if j not in idx)
    npend = [len(preds[j]) for j in range(n)]
    avail = set(j for j in left if npend[j] == 0)
    def ready(j, strict=True):
        q = prog[j]
        if npend[j]: return False
        if lock[0] and 'scc' in q.wr and lock[0] != {j}: return False
        if strict:
            if clk.t < q.tmin: return False
            if q.cls in SP and clk.t < vmfree[0]: return False
            for p in preds[j]:
                if nst[0] - pos[p] - 1 < 8 and nst[0] - pos[p] - 1 < need_ws(prog[p], q): return False
                if clk.t < when[p] + elat(p, j): return False
        return True
    def emit(j):
        q = prog[j]
        t0 = max([when[p] + elat(p, j) for p in preds[j]] + [0])
        if q.cls in SP: t0 = max(t0, vmfree[0] - 2 * SP[q.cls])
        if t0 > clk.t:
            if info is not None: info.setdefault('stall', []).append((clk.t, t0 - clk.t, q.txt))
            clk.t = t0
        when[j] = clk.issue(q); pos[j] = nst[0]; nst[0] += states(q); done[j] = True
        if q.cls in SP: vmfree[0] = max(vmfree[0], when[j]) + SP[q.cls]
        if q.cls == 'bar' and info is not None: info.setdefault('bar', []).append(when[j] - 22)
        lock[0].discard(j)
        if j in users: lock[0] = set(users[j])
        out.append(q); left.discard(j); avail.discard(j)
        for s_ in succ[j]:
            npend[s_] -= 1
            if npend[s_] == 0 and s_ not in idx: avail.add(s_)
    def cands(classes, gap, strict=True):
        c = [j for j in avail if prog[j].cls in classes and prog[j].at <= gap and ready(j, strict)]
        c.sort(key=lambda j: (j not in lock[0], dl[j], j)); return c
    ALL = MEM + VEC4 + VEC8 + SCAL + ('pk',)
    def fill_one(gap, force=False):
        for g_, strict in ((gap, True), (10**9, True), (10**9, False)):
            c = cands(ALL, g_, strict)
            if c:
                if clk.lastvec in MEM:
                    m_ = [j for j in c if prog[j].cls in MEM]
                    if m_: c = m_
                emit(c[0]); return True
            if not force: return False
        return False
    for k, m in enumerate(mf):
        while not ready(m):
            if not fill_one(k, force=npend[m] > 0):
                if npend[m]: raise RuntimeError(f"deadlock before mfma {k}: {prog[m]}")
                break
        emit(m); gap = k + 1
        sc = cands(SCAL, gap)
        if sc: emit(sc[0])
        nds = 0
        while clk.t < clk.pipe:
            rem = clk.pipe - clk.t
            mem = cands(MEM, gap) if clk.lastvec not in ('valu', 'perm', 'trans', 'pk') else []
            if nds: mem = [j for j in mem if cost(prog[j]) == 4]
            v4 = cands(VEC4, gap); tr = cands(VEC8, gap)
            pick = None
            if mem and nds < ds_per_gap and (nds == 0 or not v4) and \
               (cost(prog[mem[0]]) > 4 or v4 or len(mem) > 1 or nds or not tr or dl[mem[0]] <= gap + 2):
                pick = mem[0]; nds += 1
            elif rem >= 8:
                if tr and (len(v4) < 2 or (dl[tr[0]], tr[0]) < (dl[v4[0]], v4[0])): pick = tr[0]
                elif v4: pick = v4[0]
            else:
                if v4: pick = v4[0]
                elif tr: pick = tr[0]
            if pick is None: break
            emit(pick)
        over = sum(cost(prog[j]) for j in left if prog[j].cls not in SCAL) - 8 * (len(mf) - gap)
        nov = 0
        while over > 0 and nov < max_over:
            v4 = cands(VEC4, gap); tr = cands(VEC8, gap)
            if len(v4) + len(tr) < 3 and gap < len(mf) - 3: break
            c = sorted(v4 + (tr if over >= 8 else []), key=lambda j: (dl[j], j))
            if not c: break
            over -= cost(prog[c[0]]); emit(c[0]); nov += 1
    while left:
        if not fill_one(10**9, force=True):
            raise RuntimeError("deadlock at end: " + str([prog[j] for j in left][:5]))
    if info is not None: info['end'] = max(clk.t, clk.pipe)
    return out

def legalize(seq, lgkm_in=(), vm_in=(), hoist=True):
    out = []
    lg = [set(x) for x in lgkm_in]; vm = [set(x) for x in vm_in]
    def place(kind, nleft):
        p = len(out); n = nleft
        cls = ('ds', 'dsw') if kind == 'lgkm' else ('dma', 'vst', 'vld')
        if hoist:
            q = p; m = n
            while q > 0 and p - q < 6:
                i = out[q-1]
                if i.cls == 'mfma':
                    if q == len(out) or out[q].cls not in SCAL: p, n = q, m
                    elif out[q].cls == 'wait' and out[q].grp != kind and out[q].grp != 'both':
                        out[q] = I(out[q].txt + (f" lgkmcnt({min(m,15)})" if kind == 'lgkm' else ""), 'wait', grp='both') if kind == 'lgkm' else \
                                 I(f"s_waitcnt vmcnt({min(m,63)}) " + out[q].txt.split(' ', 1)[1], 'wait', grp='both')
                        return
                    break
                if i.cls in ('label', 'br', 'bar'): break
                if i.cls in cls:
                    if m == 0: break
                    m -= 1
                q -= 1
        txt = f"s_waitcnt lgkmcnt({min(n,15)})" if kind == 'lgkm' else f"s_waitcnt vmcnt({min(n,63)})"
        out.insert(p, I(txt, 'wait', grp=kind))
    for q in seq:
        touch = set(q.rd) | set(q.wr)
        if q.cls == 'wait':
            parts = []
            for kind, lst, mx in (('vm', vm, 63), ('lgkm', lg, 15)):
                hit = [k for k, s_ in enumerate(lst) if s_ & touch]
                if hit:
                    k = max(hit); parts.append(f"{kind}cnt({min(len(lst)-1-k, mx)})"); del lst[:k + 1]
            if parts: out.append(I("s_waitcnt " + " ".join(parts), 'wait', grp='both'))
            continue
        for kind, lst in (('vm', vm), ('lgkm', lg)):
            hit = [k for k, s_ in enumerate(lst) if s_ & touch]
            if kind == 'lgkm' and q.cls == 'ds':
                hit = [k for k, s_ in enumerate(lst) if s_ & set(q.rd)]
            if kind == 'vm' and q.cls in ('dma',):
                hit = [k for k, s_ in enumerate(lst) if s_ & set(q.rd)]
            if hit:
                k = max(hit); nleft = len(lst) - 1 - k
                place(kind, nleft); del lst[:k + 1]
        out.append(q)
        if q.cls in ('ds', 'dsw'): lg.append(set(q.wr))
        if q.cls in ('dma', 'vst', 'vld'): vm.append(set(q.wr))
    out = check_hazards(out, fix=True)
    return out, lg, vm

def text(seq):
    s = []
    for i in seq:
        s.append(i.txt + ":" if i.cls == 'label' else "    " + i.txt)
    return "\n".join(s) + "\n"

def ideal(seq):
    return sum(cost(i) for i in seq if i.cls not in SCAL and i.cls != 'label')
```

```python
import random, json, os, sys
CU = [0, 1918, 2650, 4254, 4580, 5262, 6323, 6815, 7972]

def make_jobs():
    jobs = []
    for i in range(8):
        s, e = CU[i], CU[i+1]; L = e - s
        a = -(-(L % 128) // 32) * 32 or 128
        jobs.append(dict(seq=i, t0=0, nfull=0, k0=0, typ='R', store_end=min(s + a, e)))
        t0 = a
        while t0 < L:
            jobs.append(dict(seq=i, t0=t0, nfull=t0 // 32, k0=0, typ='R', store_end=min(s + t0 + 128, e)))
            t0 += 128
    return jobs

def loops(nf, has_next):
    nt = 3 if nf <= 1 else (nf + 5) // 2 if nf % 2 else (nf + 4) // 2
    return nt - 3 - (1 if has_next else 0)

def ok(j, has_next, prev):
    nf = j['nfull']; c = loops(nf, has_next)
    if has_next and nf <= 1: return False
    if c < (1 if (nf % 2 and nf > 1) else 0): return False
    if j['typ'] == 'H' and (not has_next or prev is not None): return False
    if j['typ'] == 'W' and (has_next or c < 2): return False
    if prev is not None and prev['typ'] == 'H' and (j['typ'] != 'R' or c < 1): return False
    return True

def enc(j, has_next, prev):
    assert ok(j, has_next, prev), (j, has_next, prev)
    s, e = CU[j['seq']], CU[j['seq'] + 1]
    nf = j['nfull']; k = s + 32 * j['k0']
    if nf == 0: mode, vb = 3, k - 64
    elif nf == 1: mode, vb = 2, k - 32
    elif nf % 2: mode, vb = 1, k - 32
    else: mode, vb = 0, k
    cnt = loops(nf, has_next); cnt2 = 0; state = 0; fid = 0
    if prev is not None and prev['typ'] == 'H': state, cnt, cnt2, fid = 1, 1, cnt - 1, prev['fid']
    if j['typ'] == 'W': state, cnt, fid = 2, cnt - 1, j['fid']
    w0 = ((s + j['t0']) * 4096) | cnt | ((j['typ'] == 'H') << 6) | (mode << 8) | 0x800
    w1 = ((vb * 2048) & 0xffffffff) | cnt2 | (state << 6) | (fid << 8)
    return [w0, w1, e * 2048 - 1792, j['store_end'] * 4096 - 3584]

C = dict(ms=1175, T=6400, U=5100, TH=7100, UC=5900, init=650, glue=80)
def cost(j, has_next):
    nf = j['nfull']
    body = (nf - 1) * C['ms'] if nf > 1 else C['init']
    if j['typ'] == 'H': return body + C['TH'] + C['glue']
    if j['typ'] == 'W': return body + C['UC'] + C['glue']
    return body + (C['T'] if has_next else C['U'])

def order(sl):
    H = [j for j in sl if j['typ'] == 'H']; W = [j for j in sl if j['typ'] == 'W']
    Rr = sorted([j for j in sl if j['typ'] == 'R'], key=lambda j: -j['nfull'])
    if len(H) > 1 or len(W) > 1 or not sl or len(sl) > 6: return None
    o = H + Rr + W
    for n, j in enumerate(o):
        if not ok(j, n + 1 < len(o), o[n-1] if n else None): return None
    return o
def load(o): return sum(cost(j, n + 1 < len(o)) for n, j in enumerate(o))

def split(jobs, ks):
    big = sorted(jobs, key=lambda j: -j['nfull']); out = []
    for n, j in enumerate(big):
        if n < len(ks) and ks[n]:
            k = ks[n]
            out.append(dict(j, typ='H', nfull=k - 4, fid=n, pair=n))
            out.append(dict(j, typ='W', nfull=j['nfull'] - k, k0=k, fid=n, pair=n))
        else: out.append(dict(j))
    return out

def anneal(nsplit, seed, iters=400000, nslot=32):
    rnd = random.Random(seed)
    js = split(make_jobs(), [20, 16, 12, 12, 12, 12, 12, 12][:nsplit])
    BAD = 10**6
    def sc(sl):
        o = order(sl)
        return load(o) if o else BAD + sum(cost(j, True) for j in sl)
    slots = [[] for _ in range(nslot)]
    for j in sorted(js, key=lambda j: (-(j['typ'] != 'R'), -cost(j, True))):
        k = min(range(nslot), key=lambda k: sum(cost(x, True) for x in slots[k]))
        slots[k].append(j)
    ld = [sc(s) for s in slots]
    def obj(l): return sum((x / 50000.0) ** 24 if x < BAD else 1e9 * (x / BAD) for x in l)
    import math
    cur = obj(ld); best = (max(ld), json.dumps(slots))
    where = lambda j: next(k for k in range(nslot) if any(x is j for x in slots[k]))
    for it in range(iters):
        Tm = 0.3 * (1 - it / iters) ** 2 + 1e-4
        r = rnd.random()
        if r < 0.2 and nsplit:
            p = rnd.randrange(nsplit); d = rnd.choice([-2, -1, 1, 2])
            h = next(j for j in js if j.get('pair') == p and j['typ'] == 'H'); w = next(j for j in js if j.get('pair') == p and j['typ'] == 'W')
            if not 4 <= h['nfull'] + d <= 22: continue
            a, b = where(h), where(w)
            h['nfull'] += d; w['nfull'] -= d; w['k0'] += d
            undo = lambda: (h.__setitem__('nfull', h['nfull'] - d), w.__setitem__('nfull', w['nfull'] + d), w.__setitem__('k0', w['k0'] - d))
        else:
            a, b = rnd.sample(range(nslot), 2)
            if not slots[a]: continue
            oa, ob = list(slots[a]), list(slots[b])
            x = slots[a].pop(rnd.randrange(len(slots[a])))
            if r < 0.7 and slots[b]:
                y = slots[b].pop(rnd.randrange(len(slots[b]))); slots[a].append(y)
            slots[b].append(x)
            def undo(a=a, b=b, oa=oa, ob=ob): slots[a] = oa; slots[b] = ob
        la, lb = ld[a], ld[b]; ld[a], ld[b] = sc(slots[a]), sc(slots[b])
        new = obj(ld)
        if new <= cur or rnd.random() < math.exp(-(math.log(new) - math.log(cur)) / Tm):
            cur = new
            if max(ld) < best[0]: best = (max(ld), json.dumps(slots))
        else:
            undo(); ld[a], ld[b] = la, lb
    return best[0], [order(s) for s in json.loads(best[1])]

def pack():
    return json.load(open(os.path.join(os.path.dirname(os.path.abspath(__file__)), 'pack.json')))

if __name__ == "__main__":
    for a in sys.argv[1:]:
        k, v = a.split('='); C[k] = int(v)
    best = None
    for ns in (6, 7, 8):
        for seed in range(2):
            m, sl = anneal(ns, seed, iters=150000)
            print(ns, seed, m, sum(load(o) for o in sl) / 32)
            if best is None or m < best[0]: best = (m, sl)
    sl = sorted(best[1], key=lambda o: -load(o))
    for o in sl: print(load(o), [(j['typ'], j['seq'], j['nfull']) for j in o])
    json.dump(sl, open('pack.json', 'w'))
```

```python
import sys, struct, math
from ir import *
import jobs as J

NAME = "standalone__ragged_sequences_varlen_flash_attn__ragged_kernel"
OPT = dict(ldq="nt", ldkv="", st="nt", stamp=False, qlat=2600)

O_, S_, PA, PB, PC, TRI = 0, 128, 160, 176, 192, 208
vK, vV0, vV1, vDK, vDV, vDQ0, vDQ1, vQ, vST, vST1 = 212, 213, 214, 215, 216, 217, 218, 219, 220, 221
vP0, vP1 = 222, 223
vINV, vT = 224, 228
vDP0, vDP1, vL, vFL, vL1 = 232, 233, 234, 235, 236
IDM = 244
Q_, K0, V0_, L_, ONES, K1, V1_, K2 = 0, 64, 96, 128, 144, 148, 180, 212
sQ, sK0, sK1, sV, sO = 8, 12, 16, 20, 24
sC, sW, sCNT, sWR, sDL, sRD, sVO, sVO1, sKO1, sW2K = 28, 29, 30, 31, 32, 33, 34, 35, 36, 37
sQA, sQB = 38, 39
sJ = 40
sH0, sFAIL, sBIT, sNEG, sLO, sRNG, sQL, sMODE, sNA, sNB, sKD = 72, 73, 74, 75, 76, 77, 78, 79, 80, 81, 82
sBAD, sCM, sT = 84, 86, 88
sWS, sSTATE, sFA, sDBG = 4, 83, 3, 0
LK, LV, LQ = 0, 49152, 98304

uid = [0]
def tok(p):
    uid[0] += 1; return f"#{p}{uid[0]}"

def srd(b): return R('s', b, 4)

class Blk:
    def __init__(s): s.p = []; s.reads = []; s.gate = []; s.vcc_even = True
    def add(s, *i): s.p.extend(i)
    def kread(s, kbuf, half, kbs=(0, 1), at=0, step=1):
        n = 0
        for kb in kbs:
            for st in range(4):
                t = tok('r'); s.reads.append(t); d = kbuf + kb * 16 + st * 4
                s.add(I(f"ds_read_b128 {rs('a',d,4)}, v{vK} offset:{half*8192+kb*4096+st*512}", 'ds',
                        rd=[f"v{vK}"] + s.gate, wr=R('a', d, 4) + [t], at=at + n * step)); n += 1
    def vread(s, vbuf, half, at=0, part=None):
        for db in range(8):
            for u in range(2):
                t = tok('r'); d = vbuf + db * 4 + u * 2
                if part is None: s.reads.append(t); va = vV1 if db & 1 else vV0; dep = s.gate
                else: va = vP1 if db & 1 else vP0; dep = part
                s.add(I(f"ds_read_b64_tr_b16 {rs('a',d,2)}, v{va} offset:{half*8192+u*4096+(db//2)*512}", 'ds',
                        rd=[f"v{va}"] + dep, wr=R('a', d, 2) + [t], at=at))
    def combine(s, vbuf, h):
        s.vread(vbuf, h, part=[QT[2 * h], QT[2 * h + 1]])
        qs = [2 * h, 2 * h + 1]
        for db in range(8):
            qs = qs[::-1]
            for qb in qs: s.add(mfma('v', O_ + qb * 32 + db * 4, 'a', vbuf + db * 4, 'a', IDM + (0 if qb & 1 else 2)))
    def qread(s, qb, dep, at=0):
        for st in range(4):
            d = Q_ + qb * 16 + st * 4
            s.add(I(f"ds_read_b128 {rs('a',d,4)}, v{vQ} offset:{qb*4096+st*512}", 'ds',
                    rd=[f"v{vQ}"] + dep, wr=R('a', d, 4), at=at))
    def qk(s, kbuf, blocks, pout):
        flip = False; sm = []
        for kb, qb, kind in blocks:
            p = pout + qb * 4 + kb * 2; d = S_ + kb * 16 + qb * 4
            if kind == 'zero':
                for e in range(2): sm.append(valu(f"v_mov_b32 v{p+e}, 0", [], [f"v{p+e}"]))
                continue
            order = [3, 2, 1, 0] if flip else [0, 1, 2, 3]; flip = not flip
            for n, st in enumerate(order):
                c = None if n else ('z' if kind == 'full' else TRI)
                s.add(mfma('v', d, 'a', kbuf + kb * 16 + st * 4, 'a', Q_ + qb * 16 + st * 4, c))
            for e in range(2):
                a, b = d + 2 * e, d + 2 * e + 1
                sm += [valu(f"v_mul_f32 v{a}, s{sC}, v{a}", [f"v{a}"], [f"v{a}"]),
                       valu(f"v_mul_f32 v{b}, s{sC}, v{b}", [f"v{b}"], [f"v{b}"]),
                       I(f"v_exp_f32 v{a}, v{a}", 'trans', [f"v{a}"], [f"v{a}"]),
                       I(f"v_exp_f32 v{b}, v{b}", 'trans', [f"v{b}"], [f"v{b}"]),
                       valu(f"v_cvt_pk_bf16_f32 v{p+e}, v{a}, v{b}", [f"v{a}", f"v{b}"], [f"v{p+e}"])]
        return sm
    def pv(s, vbuf, qbs, pin, first=False):
        c = 'z' if first else None
        qs = list(qbs)
        for qb in qs: s.add(mfma('a', L_ + qb * 4, 'a', ONES, 'v', pin + qb * 4, c))
        for db in range(8):
            qs = qs[::-1]
            for qb in qs: s.add(mfma('v', O_ + qb * 32 + db * 4, 'a', vbuf + db * 4, 'v', pin + qb * 4, c))
    def barrier(s, certify, at=0, tmin=0):
        t = tok('b'); w = tok('w')
        s.add(I("WAIT", 'wait', rd=list(certify) + s.reads + s.gate, wr=[w], at=max(at - 1, 0), tmin=max(tmin - 16, 0)))
        s.add(I("s_barrier", 'bar', rd=[w], wr=[t], at=at, tmin=tmin))
        s.reads = []; s.gate = [t]
    def wait(s, regs, at=0):
        s.add(I("WAIT", 'wait', rd=list(regs), wr=list(regs), at=at))
    def rotate(s, kd=sDL):
        s.add(salu(f"s_add_u32 s{sWR}, s{sRD}, s{sW2K}", [f"s{sRD}"], [f"s{sWR}", 'scc']),
              salu(f"s_cmp_eq_u32 s{sRD}, 0x8000", [f"s{sRD}"], ['scc']),
              salu(f"s_cselect_b32 s{sDL}, s{sNEG}, 0x4000", ['scc'], [f"s{sDL}"]),
              salu(f"s_add_u32 s{sRD}, s{sRD}, s{sDL}", [f"s{sRD}", f"s{sDL}"], [f"s{sRD}", 'scc']))
        if kd != sDL:
            s.add(salu(f"s_add_u32 s{kd}, s{kd}, s{sDL}", [f"s{kd}", f"s{sDL}"], [f"s{kd}", 'scc']))
        s.add(valu(f"v_add_u32 v{vK}, s{kd}, v{vK}", [f"s{kd}", f"v{vK}"], [f"v{vK}"]))
        for r in (vV0, vV1):
            s.add(valu(f"v_add_u32 v{r}, s{sDL}, v{r}", [f"s{sDL}", f"v{r}"], [f"v{r}"]))
    def dma1(s, base, ldsoff, imm, vo, sr, so, fl, t, at=0, lat=1500):
        s.add(salu(f"s_add_u32 m0, s{base}, {ldsoff-imm}", [f"s{base}"], ['m0', 'scc'], at=max(at - 1, 0)),
              I(f"buffer_load_dwordx4 v{vo}, {rs('s',sr,4)}, s{so} offen offset:{imm} {fl} lds".replace("  ", " "), 'dma',
                rd=['m0', f"v{vo}", f"s{so}"] + srd(sr) + s.gate, wr=[t], at=at, lat=lat))
    def tile_dma(s, t, last=None, clamp=False, at=0, step=0, wr=sWR):
        fl = OPT['ldkv']
        s.add(salu(f"s_add_u32 s{sVO1}, s{sVO}, 0x10000", [f"s{sVO}"], [f"s{sVO1}", 'scc']),
              salu(f"s_add_u32 s{sKO1}, s{sVO}, 0x20000", [f"s{sVO}"], [f"s{sKO1}", 'scc']))
        vo = sVO
        if clamp:
            vo = sT
            s.add(salu(f"s_max_i32 s{sT}, s{sVO}, 0", [f"s{sVO}"], [f"s{sT}", 'scc']),
                  salu(f"s_max_i32 s{sVO1}, s{sVO1}, 0", [f"s{sVO1}"], [f"s{sVO1}", 'scc']))
        if last is True:
            s.add(salu(f"s_mov_b32 s{sKO1}, s{sH0}", [f"s{sH0}"], [f"s{sKO1}"]),
                  salu(f"s_mov_b32 s{sK1+2}, s{sJ+6}", [f"s{sJ+6}"], [f"s{sK1+2}"]))
        elif last is not None:
            s.add(salu(f"s_cmp_eq_u32 s{sCNT}, {last}", [f"s{sCNT}"], ['scc']),
                  salu(f"s_cselect_b32 s{sKO1}, s{sH0}, s{sKO1}", ['scc', f"s{sH0}", f"s{sKO1}"], [f"s{sKO1}"]),
                  salu(f"s_cselect_b32 s{sK1+2}, s{sJ+6}, s{sK0+2}", ['scc', f"s{sJ+6}", f"s{sK0+2}"], [f"s{sK1+2}"]))
        n = 0
        for (lds, vreg, sr, so) in ((LK, vDK, sK0, sVO1), (LV, vDV, sV, vo), (LK + 8192, vDK, sK1, sKO1), (LV + 8192, vDV, sV, sVO1)):
            for hb in range(2):
                s.dma1(wr, lds + hb * 1024, hb * 128, vreg, sr, so, fl, t, at=at + n * step); n += 1
        s.add(salu(f"s_add_u32 s{sVO}, s{sVO}, 0x20000", [f"s{sVO}"], [f"s{sVO}", 'scc']))
    def q_dma(s, toks, sa, sb, at=0, step=0, lat=0, qbs=range(4), part=False):
        g = s.gate; s.gate = []; n = 0
        for qb in qbs:
            for rg in range(2):
                for hb in range(2):
                    s.dma1(sQL, qb * 4096 + rg * 2048 + hb * 1024, (qb & 1) * 256 + hb * 128,
                           (vDP1 if rg else vDP0) if part else (vDQ1 if rg else vDQ0), sWS if part else sQ,
                           sb if qb >= 2 else sa, 'sc1' if part else OPT['ldq'], toks[qb], at=at + n * step, lat=lat); n += 1
        s.gate = g
    def epilogue(s, qb, pk=False, kind='T'):
        inv = vINV + qb; t = vT + qb
        so = sQB if qb >= 2 else sQA
        raw = kind == 'H'; sr = sWS if raw else sO; fl = 'sc1' if raw else OPT['st']
        s.add(valu(f"v_accvgpr_read_b32 v{t}, a{L_+qb*4}", [f"a{L_+qb*4}"], [f"v{t}"]))
        if raw:
            s.add(I(f"buffer_store_dword v{t}, v{vL}, {rs('s',sWS,4)}, s{so} offen offset:{(qb&1)*4} sc1", 'vst',
                    rd=[f"v{t}", f"v{vL}", f"s{so}"] + srd(sWS), wr=[]))
        else:
            if kind == 'W': s.add(valu(f"v_add_f32 v{t}, v{vL1+qb}, v{t}", [f"v{t}", f"v{vL1+qb}"], [f"v{t}"]))
            s.add(I(f"v_rcp_f32 v{inv}, v{t}", 'trans', [f"v{t}"], [f"v{inv}"]),
              valu(f"v_subrev_u32 v{t}, s{sLO}, v{t}", [f"v{t}"], [f"v{t}"]),
              valu(f"v_cmp_le_u32 s[{sCM}:{sCM+1}], s{sRNG}, v{t}", [f"v{t}"], R('s', sCM, 2)),
              salu(f"s_or_b64 s[{sBAD}:{sBAD+1}], s[{sBAD}:{sBAD+1}], s[{sCM}:{sCM+1}]", R('s', sCM, 2) + R('s', sBAD, 2), R('s', sBAD, 2) + ['scc']))
        ob = O_ + qb * 32
        for mp in range(2):
            for m in (2 * mp, 2 * mp + 1):
                o = ob + m * 8
                if raw: pass
                elif pk:
                    for e in range(0, 8, 2):
                        hi = inv & 1
                        s.add(I(f"v_pk_mul_f32 v[{o+e}:{o+e+1}], v[{o+e}:{o+e+1}], v[{inv-hi}:{inv-hi+1}] op_sel:[0,{hi}] op_sel_hi:[1,{hi}]", 'pk',
                                [f"v{inv}", f"v{o+e}", f"v{o+e+1}"], [f"v{o+e}", f"v{o+e+1}"]))
                else:
                    for e in range(8): s.add(valu(f"v_mul_f32 v{o+e}, v{inv}, v{o+e}", [f"v{inv}", f"v{o+e}"], [f"v{o+e}"]))
                for e in range(4): s.add(valu(f"v_cvt_pk_bf16_f32 v{o+e}, v{o+2*e}, v{o+2*e+1}", [f"v{o+2*e}", f"v{o+2*e+1}"], [f"v{o+e}"]))
                for e in range(2): s.add(I(f"v_permlane16_swap_b32 v{o+e}, v{o+2+e}", 'perm', [f"v{o+e}", f"v{o+2+e}"], [f"v{o+e}", f"v{o+2+e}"]))
            for n, z in enumerate((0, 1) if s.vcc_even else (1, 0)):
                y0, y1 = ob + mp * 16, ob + mp * 16 + 8
                own, far, perm = (y0, y1, '[0,0,2,2]') if z == 0 else (y1, y0, '[1,1,3,3]')
                d = own + 4 if n == 0 else own
                for e in range(4):
                    s.add(valu(f"v_cndmask_b32_dpp v{d+e}, v{far+e}, v{own+e}, vcc quad_perm:{perm} row_mask:0xf bank_mask:0xf",
                               [f"v{far+e}", f"v{own+e}", 'vcc'], [f"v{d+e}"]))
                va = vST1 if z else vST
                s.add(I(f"buffer_store_dwordx4 {rs('v',d,4)}, v{va}, {rs('s',sr,4)}, s{so} offen offset:{(qb&1)*256+mp*128} {fl}".rstrip(), 'vst',
                        rd=R('v', d, 4) + [f"v{va}", f"s{so}"] + srd(sr), wr=[]))
                if n == 0: s.add(salu("s_not_b64 vcc, vcc", ['vcc'], ['vcc', 'scc']))
            s.vcc_even = not s.vcc_even

FULL = [(kb, qb, 'full') for kb in range(2) for qb in range(4)]
KIN = []

QT = ['#q0', '#q1', '#q2', '#q3']
def ms(kind, first=False, peel=False):
    b = Blk(); A = kind == 'A'
    pin = PC if first else (PA if A else PB); pout = PB if A else PA
    if first and not A:
        b.add(valu(f"v_subrev_u32 v{vK}, 0x2000, v{vK}", [f"v{vK}"], [f"v{vK}"]))
    b.vread(V0_, 0 if A else 1)
    if A: b.tile_dma('#t2', last=(True if peel else None), at=int(OPT.get('dat', 4)), step=int(OPT.get('dstep', 8)))
    elif first:
        b.add(salu(f"s_mov_b32 s{sT+6}, s{sWR}", [f"s{sWR}"], [f"s{sT+6}"]))
        b.tile_dma('#t2', at=4, step=8, wr=sT + 6)
    elif peel:
        q_params(b, sJ + 4); b.q_dma(QT, sNA, sNB, at=9, step=8, qbs=(0, 1))
    sm = b.qk(K0, FULL, pout); b.add(*sm)
    if not A:
        b.rotate(); b.barrier(['#t1'], at=33)
    else: b.wait(R('a', V0_, 32), at=33)
    b.pv(V0_, range(4), pin, first)
    b.kread(K0, 1 if A else 0, at=36, step=3)
    b.wait(R('a', K0, 32), at=66)
    if A and not first and not peel:
        b.add(salu(f"s_sub_u32 s{sCNT}, s{sCNT}, 1", [f"s{sCNT}"], [f"s{sCNT}", 'scc'], at=60))
    vm_in = [['#t1']] * 8 + ([] if (A or first) else [['#t2']] * 8)
    return b.p, KIN, vm_in

def diag(tb, i):
    if 2 * i > tb: return None
    k0 = 'tri' if 2 * i == tb else 'full'
    k1 = 'zero' if 2 * i + 1 > tb else ('tri' if 2 * i + 1 == tb else 'full')
    return k0, k1

def next_params(b):
    for k in range(0, 28, 2):
        b.add(salu(f"s_mov_b64 s[{sJ+k}:{sJ+k+1}], s[{sJ+k+4}:{sJ+k+5}]", R('s', sJ + k + 4, 2), R('s', sJ + k, 2)))
    cur_params(b)
def cur_params(b):
    b.add(salu(f"s_mov_b32 s{sQA}, s{sNA}", [f"s{sNA}"], [f"s{sQA}"]),
          salu(f"s_mov_b32 s{sQB}, s{sNB}", [f"s{sNB}"], [f"s{sQB}"]),
          salu(f"s_mov_b32 s{sO+2}, s{sJ+3}", [f"s{sJ+3}"], [f"s{sO+2}"]),
          salu(f"s_and_b32 s{sCNT}, s{sJ}, 0x3f", [f"s{sJ}"], [f"s{sCNT}", 'scc']),
          salu(f"s_bfe_u32 s{sSTATE}, s{sJ+1}, 0x20006", [f"s{sJ+1}"], [f"s{sSTATE}", 'scc']),
          salu(f"s_and_b32 s{sT+1}, s{sJ+4}, 0x300", [f"s{sJ+4}"], [f"s{sT+1}", 'scc']),
          salu(f"s_cselect_b32 s{sT+1}, 0x10000, 0", ['scc'], [f"s{sT+1}"]),
          salu(f"s_add_u32 s{sH0}, s{sJ+5}, s{sT+1}", [f"s{sJ+5}", f"s{sT+1}"], [f"s{sH0}", 'scc']),
          salu(f"s_and_b32 s{sH0}, s{sH0}, 0xfffff800", [f"s{sH0}"], [f"s{sH0}", 'scc']),
          salu(f"s_max_i32 s{sH0}, s{sH0}, 0", [f"s{sH0}"], [f"s{sH0}", 'scc']))
def q_params(b, j):
    b.add(salu(f"s_and_b32 s{sT+2}, s{j}, 0xfffff000", [f"s{j}"], [f"s{sT+2}", 'scc']),
          salu(f"s_lshl_b32 s{sT+3}, s{sW}, 16", [], [f"s{sT+3}", 'scc']),
          salu(f"s_add_u32 s{sNA}, s{sT+2}, s{sT+3}", [f"s{sT+2}", f"s{sT+3}"], [f"s{sNA}", 'scc']),
          salu(f"s_sub_u32 s{sNB}, s{sT+2}, s{sT+3}", [f"s{sT+2}", f"s{sT+3}"], [f"s{sNB}", 'scc']),
          salu(f"s_add_u32 s{sNB}, s{sNB}, 0x70000", [f"s{sNB}"], [f"s{sNB}", 'scc']),
          salu(f"s_mov_b32 s{sQ+2}, s{j+3}", [f"s{j+3}"], [f"s{sQ+2}"]),
          salu(f"s_bfe_u32 s{sMODE}, s{j}, 0x20008", [f"s{j}"], [f"s{sMODE}", 'scc']),
          salu(f"s_cselect_b32 s{sKD}, 0x2000, 0", ['scc'], [f"s{sKD}"]))
def kv_switch(b, j):
    b.add(salu(f"s_and_b32 s{sVO}, s{j+1}, 0xfffff800", [f"s{j+1}"], [f"s{sVO}", 'scc']))
    for r in (sK0, sK1, sV):
        b.add(salu(f"s_mov_b32 s{r+2}, s{j+2}", [f"s{j+2}"], [f"s{r+2}"]))
def fail_note(b):
    b.add(salu(f"s_cmp_lg_u64 s[{sBAD}:{sBAD+1}], 0", R('s', sBAD, 2), ['scc']),
          salu(f"s_cselect_b32 s{sT+4}, s{sBIT}, 0", ['scc', f"s{sBIT}"], [f"s{sT+4}"]),
          salu(f"s_or_b32 s{sFAIL}, s{sFAIL}, s{sT+4}", [f"s{sFAIL}", f"s{sT+4}"], [f"s{sFAIL}", 'scc']),
          salu(f"s_lshl_b32 s{sBIT}, s{sBIT}, 1", [f"s{sBIT}"], [f"s{sBIT}", 'scc']),
          salu(f"s_mov_b64 s[{sBAD}:{sBAD+1}], 0", [], R('s', sBAD, 2)))

def tail(w, kind, bt=(0, 0, 0)):
    merged = kind in 'TH'
    b = Blk(); tbs = {0: w, 1: w, 2: 7 - w, 3: 7 - w} if kind != 'H' else {qb: 99 for qb in range(4)}
    act = lambda i: [qb for qb in range(4) if diag(tbs[qb], i)]
    def blocks(i):
        return [(kb, qb, diag(tbs[qb], i)[kb]) for kb in range(2) for qb in act(i)]
    def kbs(i): return [kb for kb in range(2) if any(k == kb and kind != 'zero' for k, _, kind in blocks(i))]
    qt = QT
    lastqk = {qb: max(i for i in range(4) if qb in act(i)) for qb in range(4)}
    def after_pv(i):
        for qb in range(4):
            if lastqk[qb] == i: b.epilogue(qb, pk=(not merged and qb >= 2), kind=kind)
    def before_pv(i):
        if kind == 'W':
            for h in range(2):
                if lastqk[2 * h] == i: b.combine(K0, h)
    b.vread(V0_, 1)
    if merged:
        b.q_dma(qt, sNA, sNB, lat=int(OPT['qlat']), qbs=(2, 3))
    if kind == 'W':
        for h in range(2):
            b.q_dma(qt, sQA, sQB, lat=1200, qbs=(2 * h, 2 * h + 1), part=True)
            for qb in (2 * h, 2 * h + 1):
                so = sQB if h else sQA
                b.add(I(f"buffer_load_dword v{vL1+qb}, v{vL}, {rs('s',sWS,4)}, s{so} offen offset:{(qb&1)*4} sc1", 'vld',
                        rd=[f"v{vL}", f"s{so}"] + srd(sWS), wr=[f"v{vL1+qb}"], lat=1200))
    b.add(*b.qk(K0, blocks(0), PA))
    b.rotate(); b.barrier(['#t1'], tmin=bt[0])
    b.kread(K1, 0, kbs(1)); b.vread(V1_, 0); b.kread(K2, 1, kbs(2))
    b.pv(V0_, range(4), PB)
    if merged:
        kv_switch(b, sJ + 4); b.tile_dma('#n0', clamp=True)
    b.add(*b.qk(K1, blocks(1), PB))
    b.vread(V0_, 1)
    b.rotate(); b.barrier(['#t2'], tmin=bt[1])
    if act(3): b.kread(K1, 0, kbs(3))
    if merged: b.tile_dma('#n1')
    b.pv(V1_, act(0), PA); before_pv(0); after_pv(0)
    b.add(*b.qk(K2, blocks(2), PA))
    b.vread(V1_, 0)
    if merged: b.kread(K2, 1)
    b.pv(V0_, act(1), PB); before_pv(1); after_pv(1)
    if act(3):
        b.add(*b.qk(K1, blocks(3), PB))
        b.vread(V0_, 1)
    if merged:
        b.rotate(kd=sKD); b.barrier(['#n0'], tmin=bt[2])
        b.kread(K0, 0)
        for qb in range(4): b.qread(qb, [qt[qb]])
    nA = [(kb, qb, 'full') for kb in range(2) for qb in (0, 1)]
    nB = [(kb, qb, 'full') for kb in range(2) for qb in (2, 3)]
    if not act(3) and merged: b.add(*b.qk(K2, nA, PC))
    b.pv(V1_, act(2), PA); before_pv(2); after_pv(2)
    if act(3):
        if merged: b.add(*b.qk(K2, nA, PC))
        b.pv(V0_, act(3), PB); before_pv(3); after_pv(3)
    fail_note(b)
    if merged:
        b.add(*b.qk(K2, nB, PC))
        next_params(b)
        b.wait(R('a', K0, 32))
    return b.p, KIN, [['#t1']] * 8 + ([['#q0']] * 4 + [['#q1']] * 4 if merged else []) + [['#t2']] * 8

def tails(kind):
    bt = [0, 0, 0]; kw = dict(max_over=int(OPT.get('mo', 1)), sp=dict(dma=int(OPT.get('spd', 136))))
    if kind == 'W': kw['sp'] = dict(dma=72, vld=72)
    if kind == 'H': return [build(*tail(0, kind), 'TH', **kw)]
    for k in range(3 if kind == 'T' else 2):
        ts = []
        for w in range(4):
            info = {}; schedule(tail(w, kind, bt)[0], info=info, **kw); ts.append(info['bar'][k])
        bt[k] = max(ts)
        print("; barrier", k, ts, file=sys.stderr)
    return [build(*tail(w, kind, bt), kind + str(w), **kw) for w in range(4)]

def init_block():
    b = Blk()
    b.add(valu(f"v_subrev_u32 v{vK}, 0x2000, v{vK}", [f"v{vK}"], [f"v{vK}"]))
    b.tile_dma('#t2')
    b.add(salu(f"s_cmp_eq_u32 s{sMODE}, 2", [f"s{sMODE}"], ['scc']),
          salu(f"s_cselect_b32 s{sT+5}, -1, 0", ['scc'], [f"s{sT+5}"]))
    for e in range(16): b.add(valu(f"v_and_b32 v{PB+e}, s{sT+5}, v{PC+e}", [f"s{sT+5}", f"v{PC+e}"], [f"v{PB+e}"]))
    for e in range(0, 128, 2): b.add(valu(f"v_mov_b64 v[{O_+e}:{O_+e+1}], 0", [], R('v', O_ + e, 2)))
    for e in range(16): b.add(valu(f"v_accvgpr_write_b32 a{L_+e}, 0", [], [f"a{L_+e}"]))
    return b.p, KIN, [['#t1']] * 8

def f32(x): return struct.unpack('<I', struct.pack('<f', x))[0]

def prologue():
    t = f"""
    s_cmp_ge_u32 s2, 256
    s_cbranch_scc1 L_end
{"    s_mov_b32 s100, 0" + chr(10) + text(stamp()) if OPT['stamp'] else ""}    s_getpc_b64 s[4:5]
L_pc:
    s_lshr_b32 s3, s2, 3
    v_lshrrev_b32 v2, 2, v0
    v_lshl_add_u32 v2, s3, 6, v2
    v_min_u32 v2, (L_table-L_pc)/128, v2
    v_lshlrev_b32 v2, 7, v2
    global_load_dword v255, v2, s[4:5]
    s_lshl_b32 s3, s3, 7
    s_add_u32 s4, s4, s3
    s_addc_u32 s5, s5, 0
    s_add_u32 s4, s4, L_table-L_pc
    s_addc_u32 s5, s5, 0
    s_load_dwordx4 s[{sT}:{sT+3}], s[0:1], 0
    s_load_dwordx2 s[{sT+4}:{sT+5}], s[0:1], 16
    s_load_dwordx2 s[{sT+6}:{sT+7}], s[0:1], 32
    s_load_dwordx4 s[{sBAD}:{sBAD+3}], s[0:1], 40
    s_load_dwordx16 s[{sJ}:{sJ+15}], s[4:5], 0
    s_load_dwordx16 s[{sJ+16}:{sJ+31}], s[4:5], 64
    v_lshrrev_b32 v1, 6, v0
    v_and_b32 v0, 63, v0
    v_readfirstlane_b32 s{sW}, v1
    v_and_b32 v2, 3, v0                 ; pos / c8
    v_bfe_u32 v3, v0, 2, 3
    v_lshrrev_b32 v4, 5, v0             ; s2
    v_lshlrev_b32 v4, 6, v4
    s_lshl_b32 s{sW2K}, s{sW}, 11
    s_lshl_b32 s6, s{sW}, 14            ; w*8 rows*2048
    s_and_b32 s7, s{sW}, 1
    s_lshl_b32 s7, s7, 1
    v_lshl_add_u32 v5, v3, 11, v4
    v_add_u32 v5, s6, v5
    v_xor_b32 v6, s7, v2
    v_lshl_add_u32 v{vDK}, v6, 4, v5
    v_lshrrev_b32 v6, 2, v3
    v_lshlrev_b32 v6, 1, v6
    v_xor_b32 v6, v6, v2
    v_lshl_add_u32 v{vDV}, v6, 4, v5
    v_lshl_add_u32 v5, v3, 12, v4
    v_lshl_add_u32 v{vDP0}, v6, 4, v5
    v_add_u32 v{vDP1}, 0x8000, v{vDP0}
    v_lshl_add_u32 v{vDQ0}, v2, 4, v5
    v_xor_b32 v6, 2, v2
    v_lshl_add_u32 v{vDQ1}, v6, 4, v5
    v_add_u32 v{vDQ1}, 0x8000, v{vDQ1}
    s_add_u32 s{sQL}, s6, {LQ}
    s_and_b32 s3, s2, 7
    s_lshl_b32 s7, s3, 9
    s_lshl_b32 s3, s3, 8
    s_mov_b32 s{sQ+3}, 0x20000
    s_mov_b32 s{sK0+3}, 0x20000
    s_mov_b32 s{sK1+3}, 0x20000
    s_mov_b32 s{sV+3}, 0x20000
    s_mov_b32 s{sO+3}, 0x20000
    s_mov_b32 s{sNEG}, 0xffff8000
    s_mov_b32 s{sRD}, 0x8000
    s_waitcnt lgkmcnt(0)
    s_add_u32 s{sQ}, s{sT}, s7
    s_addc_u32 s{sQ+1}, s{sT+1}, 0
    s_add_u32 s{sK0}, s{sT+2}, s3
    s_addc_u32 s{sK0+1}, s{sT+3}, 0
    s_mov_b32 s{sK1}, s{sK0}
    s_mov_b32 s{sK1+1}, s{sK0+1}
    s_add_u32 s{sV}, s{sT+4}, s3
    s_addc_u32 s{sV+1}, s{sT+5}, 0
    s_add_u32 s{sO}, s{sT+6}, s7
    s_addc_u32 s{sO+1}, s{sT+7}, 0
    s_add_u32 s{sWS}, s{sBAD+2}, s7
    s_addc_u32 s{sWS+1}, s{sBAD+3}, 0
    s_mov_b32 s{sWS+2}, 0x8000000
    s_mov_b32 s{sWS+3}, 0x20000
    s_mov_b64 s[{sDBG}:{sDBG+1}], s[{sBAD}:{sBAD+1}]
    s_lshr_b32 s{sFA}, s3, 3
    s_add_u32 s{sFA}, s{sFA}, s{sW}
"""
    b = Blk()
    q_params(b, sJ); kv_switch(b, sJ)
    b.add(salu(f"s_lshl_b32 s{sT+1}, s{sKD}, 3", [f"s{sKD}"], [f"s{sT+1}", 'scc']),
          salu(f"s_add_u32 s{sT+1}, s{sT+1}, s{sVO}", [f"s{sT+1}", f"s{sVO}"], [f"s{sT+1}", 'scc']),
          salu(f"s_max_i32 s{sT+1}, s{sT+1}, 0", [f"s{sT+1}"], [f"s{sT+1}", 'scc']))
    for hb in range(2): b.dma1(sW2K, LK + 0x8000 + 8192 + hb * 1024, hb * 128, vDK, sK0, sT + 1, OPT['ldkv'], '#h0')
    qt = [tok('q') for _ in range(4)]
    b.q_dma(qt, sNA, sNB, qbs=(0, 1))
    seq1, _, vm = legalize(b.p, hoist=False)
    t2 = f"""
    s_mov_b32 s{sC}, {hex(f32(math.log2(math.e) / math.sqrt(128)))}
    s_mov_b32 s{sLO}, {hex(f32(2.0**-40))}
    s_mov_b32 s{sRNG}, {hex(f32(2.0**40) - f32(2.0**-40))}
    s_mov_b32 s{sFAIL}, 0
    s_mov_b32 s{sBIT}, 1
    s_mov_b64 s[{sBAD}:{sBAD+1}], 0
    v_lshrrev_b32 v3, 4, v0             ; g
    v_bfe_u32 v4, v0, 3, 1              ; (l%16)/8
    v_and_b32 v5, 7, v0
    v_lshlrev_b32 v6, 1, v4
    v_xor_b32 v6, v6, v3
    v_lshlrev_b32 v6, 4, v6
    v_lshl_add_u32 v6, v5, 6, v6
    v_lshl_add_u32 v6, v4, 11, v6       ; laneK
    v_add_u32 v{vK}, {LK+0x8000}, v6
    v_add_u32 v{vQ}, s{sQL}, v6
    v_lshrrev_b32 v4, 5, v0             ; g/2
    v_bfe_u32 v5, v0, 2, 3              ; 4*(g%2)+r
    v_and_b32 v6, 1, v3                 ; g%2
    v_lshlrev_b32 v7, 3, v2
    v_lshl_add_u32 v7, v5, 6, v7
    v_lshl_add_u32 v7, v4, 11, v7
    v_lshl_add_u32 v7, v6, 5, v7
    v_add_u32 v{vV0}, {LV+0x8000}, v7
    v_xor_b32 v{vV1}, 32, v{vV0}
    v_add_u32 v{vP0}, s{sQL}, v7
    v_xor_b32 v{vP1}, 32, v{vP0}
    v_and_b32 v5, 15, v0                ; q
    v_lshlrev_b32 v{vL}, 12, v5
    v_add_u32 v{vL}, 0x4000000, v{vL}
    v_lshlrev_b32 v7, 4, v4
    v_lshl_add_u32 v7, v6, 5, v7
    v_and_b32 v8, 1, v5
    v_lshl_add_u32 v7, v8, 6, v7
    v_and_b32 v8, 14, v5
    v_lshl_add_u32 v{vST}, v8, 12, v7
    v_add_u32 v{vST1}, 0x1000, v{vST}
    v_lshlrev_b32 v3, 2, v3
    v_sub_u32 v5, v5, v3                ; q - 4g
    v_mov_b32 v7, 0xff800000
    v_mov_b32 v6, 0x3f803f80
"""
    for r in range(4):
        t2 += f"    v_cmp_gt_i32 vcc, {r}, v5\n    v_accvgpr_write_b32 a{ONES+r}, v6\n    s_nop 0\n    v_cndmask_b32 v{TRI+r}, 0, v7, vcc\n"
    t2 += "    v_mov_b32 v8, 0x3f80\n    v_mov_b32 v9, 0x3f800000\n"
    for r in range(2):
        t2 += f"    v_cmp_eq_u32 vcc, {2*r}, v5\n    v_accvgpr_write_b32 a{IDM+4*r}, 0\n    s_nop 0\n    v_cndmask_b32 v10, 0, v8, vcc\n"
        t2 += f"    v_cmp_eq_u32 vcc, {2*r+1}, v5\n    v_accvgpr_write_b32 a{IDM+4*r+1}, 0\n    s_nop 0\n    v_cndmask_b32 v10, v10, v9, vcc\n"
        t2 += f"    v_accvgpr_write_b32 a{IDM+2+r}, v10\n"
    t2 += "    s_mov_b32 vcc_lo, 0x55555555\n    s_mov_b32 vcc_hi, 0x55555555\n"
    b = Blk()
    b.q_dma(qt, sNA, sNB, qbs=(2, 3))
    b.tile_dma('#n0', clamp=True, wr=sW2K)
    b.barrier(['#h0'])
    b.kread(K1, 1)
    pre2 = b.p; b.p = []
    b.add(salu(f"s_add_u32 s{sT+6}, s{sW2K}, 0x4000", [], [f"s{sT+6}", 'scc']))
    b.tile_dma('#n1', wr=sT + 6, at=2, step=4)
    cur_params(b)
    for qb in range(4):
        b.qread(qb, [qt[qb]], at=max(8 * qb - 6, 0))
    b.add(*b.qk(K1, [(kb, qb, 'full') for qb in range(4) for kb in range(2)], PC))
    b.rotate(kd=sKD); b.barrier(['#n0'], at=32)
    b.kread(K0, 0)
    b.wait(R('a', K0, 32))
    seq2, lg, vm2 = legalize(pre2 + schedule(b.p), vm_in=vm)
    return t + text(seq1) + t2, seq2

def build(p, lg, vm, name, sched=True, **kw):
    info = {}
    seq = schedule(p, info=info, **kw) if sched else p
    if info.get('stall'): print(";   stalls", [(a, b_, c[:28]) for a, b_, c in info['stall']], "end", info['end'], file=sys.stderr)
    seq, lo, vo = legalize(seq, lg, vm)
    if name in ('msA', 'msB') and OPT.get('drop'):
        for d in OPT['drop'].split(','):
            seq = [i if not (i.cls == d or i.txt.startswith(d)) else I("v_mov_b32 v250, v251", 'valu') if i.cls in MEM else I("s_nop 0", 'nop') for i in seq]
    nm = sum(i.cls == 'mfma' for i in seq); nn = sum(states(i) for i in seq if i.cls == 'nop')
    print(f"; {name}: {len(seq)} instrs, {nm} mfma, est {estimate(seq)} cyc (ideal {ideal(seq)}), nops {nn}, waits {sum(i.cls=='wait' for i in seq)}, lgkm_out {len(lo)} vm_out {len(vo)}", file=sys.stderr)
    return seq

def stamp():
    if not OPT['stamp']: return []
    t = ["s_memrealtime s[96:97]", "s_memtime s[98:99]", "s_waitcnt lgkmcnt(0)", "s_mov_b32 m0, s100", "s_nop 0",
         "v_writelane_b32 v240, s96, m0", "v_writelane_b32 v241, s98, m0", "s_add_u32 s100, s100, 1"]
    return [I(x, 'salu') for x in t]
def fine(seq, name):
    n = int(OPT.get('fine', 0))
    if not n: return seq
    out = []; c = Clock(); est = []
    for k, i in enumerate(seq):
        if k % n == 0 or k == len(seq) - 1:
            est.append(c.t)
            out += [I(x, 'salu') for x in ("v_writelane_b32 v242, s98, s101", "s_add_u32 s101, s101, 1", "s_memtime s[98:99]")] if False else \
                   [I(x, 'salu') for x in (f"v_writelane_b32 v242, s98, {min(len(est)-1 + (32 if name[0]=='U' else 0), 63)}", "s_memtime s[98:99]")]
        c.issue(i); out.append(i)
    out += [I(x, 'salu') for x in ("s_waitcnt lgkmcnt(0)", f"v_writelane_b32 v242, s98, {min(len(est) + (32 if name[0]=='U' else 0), 63)}")]
    print(f"; fine {name}:", " ".join(str(b - a) for a, b in zip(est, est[1:])), file=sys.stderr)
    return out
def br(txt): return I(txt, 'br')
def lab(n): return I(n, 'label')

def dispatch_mode():
    return [salu(f"s_cmp_eq_u32 s{sMODE}, 0", [f"s{sMODE}"], ['scc']), br("s_cbranch_scc1 L_Fe"),
            salu(f"s_cmp_eq_u32 s{sMODE}, 1", [f"s{sMODE}"], ['scc']), br("s_cbranch_scc1 L_Fo"), br("s_branch L_init")]

def kernel(slots):
    pre, p0 = prologue()
    B = {}
    B['P0'] = stamp() + p0 + stamp() + dispatch_mode()
    B['Fe'] = build(*ms('A', True), 'Fe') + [salu(f"s_cmp_eq_u32 s{sCNT}, 0", [], ['scc']), br("s_cbranch_scc1 L_tail")]
    B['B'] = build(*ms('B'), 'msB')
    B['A'] = build(*ms('A'), 'msA') + [salu(f"s_cmp_lg_u32 s{sCNT}, 0", [], ['scc']), br("s_cbranch_scc1 L_B")]
    raw = lambda t: [I(x.strip()[:-1], 'label') if x.strip().endswith(':') else I(x.strip(), 'br' if 'branch' in x else 'salu') for x in t.strip().split("\n")]
    def wdisp(p): return sum(([salu(f"s_cmp_eq_u32 s{sW}, {w}", [], ['scc']), br(f"s_cbranch_scc1 L_{p}{w}")] for w in (1, 2, 3)), [])
    B['tail'] = raw(f"""
        s_cmp_lg_u32 s{sSTATE}, 0
        s_cbranch_scc1 L_glue
        L_go:""") + stamp() + [salu(f"s_cmp_eq_u32 s{sJ+4}, 0", [], ['scc']), br("s_cbranch_scc1 L_fin")]
    B['tail'] += build(*ms('B', peel=True), 'Bp') + build(*ms('A', peel=True), 'Ap') + stamp()
    B['tail'] += raw(f"s_bitcmp1_b32 s{sJ}, 6\ns_cbranch_scc1 L_H0") + wdisp('T')
    for w, t in enumerate(tails('T')): B[f'T{w}'] = fine(t, f'T{w}') + stamp() + dispatch_mode()
    B['H0'] = fine(tails('H')[0], 'TH') + stamp() + dispatch_mode()
    B['Fo'] = build(*ms('B', True), 'Fo') + [br("s_branch L_A")]
    B['init'] = build(*init_block(), 'init', sched=False) + [br("s_branch L_tail")]
    B['fin'] = wdisp('U')
    for w, t in enumerate(tails('U')): B[f'U{w}'] = fine(t, f'U{w}') + [br("s_branch L_done")]
    B['glue'] = raw(f"""
        s_bfe_u32 s{sT}, s{sJ+1}, 0x30008
        s_lshl_b32 s{sT}, s{sT}, 2
        s_add_u32 s{sT}, s{sT}, s{sFA}
        v_mov_b32 v{vT}, s{sT}
        s_cmp_eq_u32 s{sSTATE}, 2
        s_cbranch_scc1 L_g2
        s_cmp_eq_u32 s{sSTATE}, 3
        s_cbranch_scc1 L_g3
        v_mov_b32 v{vFL}, 1
        s_mov_b64 exec, 1
        global_store_byte v{vT}, v{vFL}, s[{sDBG}:{sDBG+1}] sc1
        s_mov_b64 exec, -1
        s_mov_b32 s{sSTATE}, 0
        s_and_b32 s{sCNT}, s{sJ+1}, 0x3f
        s_cbranch_scc1 L_B
        s_branch L_go
        L_g2:
        global_load_ubyte v{vFL}, v{vT}, s[{sDBG}:{sDBG+1}] sc1
        s_mov_b32 s{sSTATE}, 3
        s_mov_b32 s{sCNT}, 1
        s_branch L_B
        L_g3:
        s_waitcnt vmcnt(8)
        L_g4:
        v_readfirstlane_b32 s{sT}, v{vFL}
        s_nop 1
        s_cmp_lg_u32 s{sT}, 0
        s_cbranch_scc1 L_g5
        s_sleep 8
        global_load_ubyte v{vFL}, v{vT}, s[{sDBG}:{sDBG+1}] sc1
        s_waitcnt vmcnt(0)
        s_branch L_g4
        L_g5:""") + stamp() + wdisp('W')
    for w, t in enumerate(tails('W')): B[f'W{w}'] = fine(t, f'U{w}') + [br("s_branch L_done")]
    ent = ['P0', 'H0'] + [f'T{w}' for w in range(4)]
    edges = [(a, x) for a in ent for x in ('Fe', 'Fo', 'init')] + [('Fe', 'B'), ('B', 'A'), ('A', 'B'), ('Fo', 'A')]
    edges += [(a, f'U{w}') for a in ('Fe', 'A', 'init') for w in range(4)] + [('tail', f'T{w}') for w in range(4)]
    edges += [('Fe', 'tail'), ('A', 'tail'), ('tail', 'H0')] + [('A', f'W{w}') for w in range(4)]
    assert not check_hazards(B['tail'])
    for a, x in edges:
        pa = [i for i in B[a] if i.cls not in ('br',)][-16:]
        bad = check_hazards(pa + B[x][:16], start=len(pa))
        assert not bad, (a, x, bad)
    order = ['P0', 'Fe', 'B', 'A', 'tail', 'T0', 'T1', 'T2', 'T3', 'H0', 'Fo', 'init', 'fin', 'U0', 'U1', 'U2', 'U3', 'glue', 'W0', 'W1', 'W2', 'W3']
    s = f"""; varlen causal GQA flash attention, generated by gen/gen.py (hand-written generator)
; @launch grid=(256,1,1) block=(256,1,1) lds=163840
.amdgcn_target "amdgcn-amd-amdhsa--gfx950"
.text
.globl {NAME}
.p2align 8
.type {NAME},@function
{NAME}:
""" + pre
    for k in order:
        s += f"L_{k}:\n" + text(B[k])
    s += "L_done:\n"
    if OPT['stamp']:
        s += text(stamp()) + "    s_waitcnt vmcnt(0)\n" + text(stamp())
        s += f"""    s_and_b32 s3, s2, 7
    s_lshl_b32 s3, s3, 9
    s_sub_u32 s4, s4, s3
    s_subb_u32 s5, s5, 0
    v_mbcnt_lo_u32_b32 v0, -1, 0
    v_mbcnt_hi_u32_b32 v0, -1, v0
    v_lshlrev_b32 v0, 3, v0
    s_lshl_b32 s3, s2, 2
    s_add_u32 s3, s3, s{sW}
    s_lshl_b32 s3, s3, 9
    s_add_u32 s3, s3, 0x7000000
    s_getreg_b32 s96, hwreg(HW_REG_XCC_ID)
    s_getreg_b32 s97, hwreg(HW_REG_HW_ID)
    v_writelane_b32 v240, s96, 63
    v_writelane_b32 v241, s97, 63
    v_writelane_b32 v240, s100, 62
    buffer_store_dwordx2 v[240:241], v0, s[4:7], s3 offen
    s_add_u32 s3, s3, 0x80000
    buffer_store_dwordx2 v[242:243], v0, s[4:7], s3 offen
"""
        if OPT.get('spin'):
            a_, b_, k_, n_ = OPT['spin'].split(',')
            s += f"""    s_cmp_ge_u32 s2, {n_}
    s_cbranch_scc1 L_end
    v_readlane_b32 s96, v240, {a_}
    v_readlane_b32 s97, v240, {b_}
    s_sub_u32 s99, s100, 1
    s_nop 4
    v_readlane_b32 s99, v240, s99
    s_nop 4
    s_sub_u32 s96, s97, s96
    s_mul_i32 s96, s96, {k_}
    s_min_u32 s96, s96, 20000
L_spin:
    s_memrealtime s[4:5]
    s_waitcnt lgkmcnt(0)
    s_sub_u32 s4, s4, s99
    s_cmp_lt_u32 s4, s96
    s_cbranch_scc1 L_spin
"""
        if OPT.get('dbg'):
            s += f"""    s_load_dwordx2 s[4:5], s[0:1], 40
    s_waitcnt lgkmcnt(0)
    s_mov_b32 s6, 0x100
    v_readlane_b32 s96, v240, 0
    v_readlane_b32 s97, v240, 1
    v_readlane_b32 s98, v240, 2
    s_sub_u32 s99, s100, 1
    s_nop 4
    v_readlane_b32 s99, v240, s99
    s_nop 4
    s_not_b32 s101, s96
    v_mov_b32 v1, s101
    v_mov_b32 v2, s96
    v_mov_b32 v3, s97
    v_mov_b32 v4, s98
    v_mov_b32 v5, s99
    v_mov_b32 v0, 0
    s_mov_b64 exec, 1
    buffer_atomic_umax v1, v0, s[4:7], 0 offen offset:0
    buffer_atomic_umax v2, v0, s[4:7], 0 offen offset:4
    buffer_atomic_umax v3, v0, s[4:7], 0 offen offset:8
    buffer_atomic_umax v4, v0, s[4:7], 0 offen offset:12
    buffer_atomic_umax v5, v0, s[4:7], 0 offen offset:16
    s_mov_b64 exec, 0xff
    s_cmp_eq_u32 s3, 0
    s_cbranch_scc0 L_end
    v_mbcnt_lo_u32_b32 v0, -1, 0
    v_lshlrev_b32 v0, 2, v0
    v_subrev_u32 v240, s96, v240
    buffer_store_dword v240, v0, s[4:7], 0 offen offset:32
"""
    s += "L_end:\n    s_endpgm\n.p2align 7\nL_table:\n"
    for sl in slots:
        assert len(sl) <= 7
        w = sum((J.enc(j, n + 1 < len(sl), sl[n-1] if n else None) for n, j in enumerate(sl)), []); w += [0] * (32 - len(w))
        s += "    .long " + ", ".join(hex(x) for x in w) + "\n"
    s += f""".section .rodata,"a"
.p2align 6
.amdhsa_kernel {NAME}
  .amdhsa_next_free_vgpr 512
  .amdhsa_next_free_sgpr 102
  .amdhsa_accum_offset 256
  .amdhsa_group_segment_fixed_size 0
  .amdhsa_kernarg_size 56
  .amdhsa_user_sgpr_count 2
  .amdhsa_user_sgpr_kernarg_segment_ptr 1
  .amdhsa_system_sgpr_workgroup_id_x 1
.end_amdhsa_kernel
"""
    return s

if __name__ == "__main__":
    out = sys.argv[1] if len(sys.argv) > 1 else "standalone__ragged_sequences_varlen_flash_attn__ragged.s"
    for a in sys.argv[2:]:
        k, v = a.split('='); OPT[k] = v
    slots = J.pack()
    open(out, "w").write(kernel(slots))
```
